```python
import torch

def _softmax(x, axis=-1):
    return torch.softmax(x, dim=axis)
def _gelu(x):
    return torch.nn.functional.gelu(x, approximate="tanh")
def _silu(x):
    return torch.nn.functional.silu(x)
def _sigmoid(x):
    return torch.sigmoid(x)
def _layernorm(x, axis=-1, eps=1e-5):
    m = x.mean(dim=axis, keepdim=True)
    v = x.var(dim=axis, keepdim=True, unbiased=False)
    return (x - m) / torch.sqrt(v + eps)
def _scatter_add(tgt, idx, src, axis=0):
    return tgt.clone().index_add_(axis, idx, src)
def _segment_sum(src, seg, n):
    out = torch.zeros((n,) + src.shape[1:], dtype=src.dtype)
    return out.index_add_(0, seg, src)
def _pad(x, pw):
    flat = tuple(v for pair in reversed(pw) for v in pair)
    return torch.nn.functional.pad(x, flat)

kernel_name = 'parallel_sum__linear_kernel_hedgehog__dense_activation_gelu__prompt'

def setup_inputs():

    _w = (lambda a: (lambda t: t.to(torch.bfloat16) if t.is_floating_point() else t)(torch.as_tensor(a)))
    def _A_setup():
        B, S, D, H = 1, 2048, 512, 32
        Dh = D // H
        return {
            "x": _w((lambda *s: torch.randn(*s, dtype=torch.bfloat16) * 0.05)(B, S, D)),
            "wqkv": _w((lambda *s: torch.randn(*s, dtype=torch.bfloat16) * 0.2)(D, 3 * D)),
            "w_phi": _w((lambda *s: torch.randn(*s, dtype=torch.bfloat16) * 0.2)(H, Dh, Dh) * (Dh ** -0.5)),
            "wo": _w((lambda *s: torch.randn(*s, dtype=torch.bfloat16) * 0.05)(D, D)),
        }
    _A_in = _A_setup()

    def _B_setup():
        B, S, D, F = 1, 2048, 512, 1376
        return {
            "x": _w((lambda *s: torch.randn(*s, dtype=torch.bfloat16) * 0.05)(B, S, D)),
            "w1": _w((lambda *s: torch.randn(*s, dtype=torch.bfloat16) * 0.8)(D, F) * (D ** -0.5)),
            "b1": _w((lambda *s: torch.randn(*s, dtype=torch.bfloat16) * 12.8)(F) * 0.01),
            "w2": _w((lambda *s: torch.randn(*s, dtype=torch.bfloat16) * 0.4)(F, D) * (F ** -0.5)),
            "b2": _w((lambda *s: torch.randn(*s, dtype=torch.bfloat16) * 6.4)(D) * 0.01),
        }
    _B_in = _B_setup()

    return {
        "A_x": _A_in["x"],
        "A_wqkv": _A_in["wqkv"],
        "A_w_phi": _A_in["w_phi"],
        "A_wo": _A_in["wo"],
        "B_x": _B_in["x"],
        "B_w1": _B_in["w1"],
        "B_b1": _B_in["b1"],
        "B_w2": _B_in["w2"],
        "B_b2": _B_in["b2"],
    }

def reference(A_x, A_wqkv, A_w_phi, A_wo, B_x, B_w1, B_b1, B_w2, B_b2):
    def _A_ref(x, wqkv, w_phi, wo):
        B, S, D = x.shape
        H = 32; Dh = D // H
        qkv = (lambda x, *d: x.permute(*d))((x @ wqkv).reshape(B, S, 3, H, Dh), 2, 0, 3, 1, 4)
        q, k, v = qkv[0], qkv[1], qkv[2]
        pq = torch.einsum("bhsd,hdf->bhsf", q, w_phi)
        pk = torch.einsum("bhsd,hdf->bhsf", k, w_phi)
        phi_q = torch.concatenate([_softmax(pq, axis=-1), _softmax(-pq, axis=-1)], axis=-1)
        phi_k = torch.concatenate([_softmax(pk, axis=-1), _softmax(-pk, axis=-1)], axis=-1)
        kv = torch.einsum("bhsf,bhsd->bhfd", phi_k, v)
        z  = torch.einsum("bhsf->bhf", phi_k)
        num = torch.einsum("bhqf,bhfd->bhqd", phi_q, kv)
        den = torch.einsum("bhqf,bhf->bhq", phi_q, z)[..., None] + 1e-6
        o = num / den
        return (lambda x, *d: x.permute(*d))(o, 0, 2, 1, 3).reshape(B, S, D) @ wo

    def _B_ref(x, w1, b1, w2, b2):
        h = torch.einsum("bsd,df->bsf", x, w1) + b1
        h = _gelu(h)
        return torch.einsum("bsf,fd->bsd", h, w2) + b2

    x = A_x
    xn = _layernorm(x, axis=-1)
    return x + _A_ref(xn, A_wqkv, A_w_phi, A_wo) + _B_ref(xn, B_w1, B_b1, B_w2, B_b2)
```

```python
NAME = 'parallel_sum__linear_kernel_hedgehog__dense_activation_gelu__prompt'

class Asm:
    def __init__(self):
        self.lines = []
        self.uid = 0
    def __call__(self, s=''):
        for l in s.split('\n'):
            self.lines.append('    ' + l.strip() if l.strip() and not l.strip().endswith(':') else l.strip())
    def label(self, base='L'):
        self.uid += 1
        return f'{base}_{self.uid}'
    def text(self):
        return '\n'.join(self.lines) + '\n'

def kernel_header(name):
    return f'''.globl {name}
.p2align 8
.type {name},@function
{name}:
'''

def kernel_desc(name, vgpr=256, sgpr=102, accum=256):
    return f'''.p2align 6
.amdhsa_kernel {name}
  .amdhsa_next_free_vgpr {vgpr}
  .amdhsa_next_free_sgpr {sgpr}
  .amdhsa_accum_offset {accum}
  .amdhsa_group_segment_fixed_size 0
  .amdhsa_kernarg_size 96
  .amdhsa_user_sgpr_count 2
  .amdhsa_user_sgpr_kernarg_segment_ptr 1
  .amdhsa_system_sgpr_workgroup_id_x 1
  .amdhsa_float_denorm_mode_32 3
.end_amdhsa_kernel
'''

def file_text(kernels, comment=''):
    out = []
    for l in comment.split('\n'):
        if l.strip():
            out.append('; ' + l)
    single = len(kernels) == 1 and kernels[0]['name'] == NAME + '_kernel'
    for k in kernels:
        g, b = k['grid'], k['block']
        if single:
            out.append(f"; @launch grid=({g},1,1) block=({b},1,1) lds={k['lds']}")
        else:
            out.append(f"; @launch kernel={k['name']} grid=({g},1,1) block=({b},1,1) lds={k['lds']}")
    out.append('.amdgcn_target "amdgcn-amd-amdhsa--gfx950"')
    out.append('.text')
    seen = set()
    for k in kernels:
        if k['name'] in seen: continue
        seen.add(k['name'])
        out.append(kernel_header(k['name']) + k['body'])
    out.append('.section .rodata,"a"')
    seen = set()
    for k in kernels:
        if k['name'] in seen: continue
        seen.add(k['name'])
        out.append(kernel_desc(k['name'], k.get('vgpr', 256), k.get('sgpr', 102), k.get('accum', 256)))
    return '\n'.join(out) + '\n'
```

```python
import sys, re
sys.path.insert(0, 'tools')
from asmlib import *
src = open(sys.argv[1]).read()
K = NAME + '_kernel'
main = f'; @launch kernel={K} grid=(256,1,1) block=(512,1,1) lds=163840'
def variant(lines, extra_body='', extra_desc=''):
    s = re.sub(r'; @launch grid.*\n', '\n'.join(lines) + '\n', src)
    s = s.replace('.section .rodata,"a"', extra_body + '.section .rodata,"a"') + extra_desc
    return s
def probe(name, n, stride, karg, size):
    a = Asm()
    a('s_cmp_ge_u32 s2, 1'); a(f's_cbranch_scc1 L_{name}_end')
    if n:
        a(f's_load_dwordx2 s[10:11], s[0:1], {karg}'); a('s_waitcnt lgkmcnt(0)')
        a('s_mov_b32 s24, s10'); a('s_and_b32 s25, s11, 0xffff'); a(f's_mov_b32 s26, {size}'); a('s_mov_b32 s27, 0x20000')
        a('v_mov_b32 v1, 0'); a('s_mov_b32 s3, 0')
        a(f'L_{name}_lp:')
        a('buffer_load_dword v2, v1, s[24:27], s3 offen'); a('s_waitcnt vmcnt(0)')
        a(f's_add_u32 s3, s3, {stride}'); a(f's_cmp_lt_u32 s3, {n*stride}'); a(f's_cbranch_scc1 L_{name}_lp')
    a(f'L_{name}_end:'); a('s_endpgm')
    return kernel_header(name) + a.text(), kernel_desc(name, 8, 32, 8)
out = 'out/'
open(out + 'l_one.s', 'w').write(variant([main]))
open(out + 'l_two.s', 'w').write(variant([main, main]))
for nm, n, stride, karg, size in (('triv', 0, 0, 0, 0), ('pbx', 100, 16384 + 128, 32, 2097152), ('pws', 100, 16384 + 128, 88, 0x10000000), ('pwsfar', 100, 2097152 + 128, 88, 0x10000000)):
    b, d = probe(nm + '_kernel', n, stride, karg, size)
    open(out + f'l_{nm}.s', 'w').write(variant([f'; @launch kernel={nm}_kernel grid=(64,1,1) block=(64,1,1) lds=0', main], b, d))
def probe2(name, kind):
    a = Asm()
    a('s_cmp_ge_u32 s2, 256'); a(f's_cbranch_scc1 L_{name}_end')
    a('s_load_dwordx16 s[32:47], s[0:1], 0'); a('s_load_dwordx8 s[48:55], s[0:1], 64'); a('s_waitcnt lgkmcnt(0)')
    bufs = [(32, 2097152), (34, 512*3072), (36, 16384), (38, 524288), (42, 512*2752), (44, 2752), (46, 1376*1024), (48, 1024)]
    a('s_mov_b32 s27, 0x20000')
    if kind in ('tlb', 'all'):
        a('v_lshlrev_b32 v1, 21, v0')
        for b, sz in bufs + [(50, 2097152), (54, 10 << 20)]:
            a(f's_mov_b32 s24, s{b}'); a(f's_and_b32 s25, s{b+1}, 0xffff'); a(f's_mov_b32 s26, {sz}')
            a('buffer_load_dword v2, v1, s[24:27], 0 offen offset:512')
    if kind in ('pf', 'all'):
        a('v_lshlrev_b32 v1, 7, v0'); a('s_lshl_b32 s3, s2, 13')
        for b, sz in bufs:
            a(f's_mov_b32 s24, s{b}'); a(f's_and_b32 s25, s{b+1}, 0xffff'); a(f's_mov_b32 s26, {sz}')
            a('v_add_u32 v3, s3, v1')
            a('buffer_load_dword v2, v3, s[24:27], 0 offen')
    if kind in ('code', 'all'):
        a('s_getpc_b64 s[4:5]'); a(f'L_{name}_pc:'); a(f's_sub_u32 s4, s4, L_{name}_pc-L_start'); a('s_subb_u32 s5, s5, 0')
        a('v_lshlrev_b32 v1, 7, v0')
        for i in range(3):
            a('v_min_u32 v3, L_codeend-L_start-4, v1'); a('global_load_dword v2, v3, s[4:5]'); a('v_add_u32 v1, 8192, v1')
    a('s_waitcnt vmcnt(0)')
    a(f'L_{name}_end:'); a('s_endpgm')
    return kernel_header(name) + a.text(), kernel_desc(name, 8, 64, 8)
for nm in ('tlb', 'pf', 'code', 'all'):
    b, d = probe2(nm + '_kernel', nm)
    open(out + f'l_{nm}.s', 'w').write(variant([f'; @launch kernel={nm}_kernel grid=(256,1,1) block=(64,1,1) lds=0', main], b, d))
b, d = probe('p25_kernel', 25, 16384 + 128, 32, 2097152)
open(out + 'l_p25.s', 'w').write(variant(['; @launch kernel=p25_kernel grid=(64,1,1) block=(64,1,1) lds=0', main], b, d))
for j in range(8):
    b, d = probe(f'px{j}_kernel', 25, 16384 + 128, 32, 2097152)
    b = b.replace('s_cmp_ge_u32 s2, 1', f's_cmp_lg_u32 s2, {j}')
    open(out + f'l_px{j}.s', 'w').write(variant([f'; @launch kernel=px{j}_kernel grid=(64,1,1) block=(64,1,1) lds=0', main], b, d))
def probe3(name, kind, n):
    a = Asm()
    a('s_cmp_ge_u32 s2, 256'); a(f's_cbranch_scc1 L_{name}_end')
    a('s_load_dwordx2 s[10:11], s[0:1], 88'); a('s_waitcnt lgkmcnt(0)')
    a('s_mov_b32 s24, s10'); a('s_and_b32 s25, s11, 0xffff'); a('s_mov_b32 s26, 0x10000000'); a('s_mov_b32 s27, 0x20000')
    a('v_lshlrev_b32 v1, 4, v0'); a(f's_mul_i32 s3, s2, {n*4096}'); a('s_add_u32 s3, s3, 0x4000000')
    for i in range(n):
        if kind == 'st': a('buffer_store_dwordx4 v[4:7], v1, s[24:27], s3 offen sc1')
        else: a('buffer_load_dwordx4 v[4:7], v1, s[24:27], s3 offen')
        a('s_add_u32 s3, s3, 4096')
    a('s_waitcnt vmcnt(0)')
    a(f'L_{name}_end:'); a('s_endpgm')
    return kernel_header(name) + a.text(), kernel_desc(name, 8, 64, 8)
for kind in ('st', 'ld'):
    for n in (8, 24, 56):
        nm = f'{kind}{n}'
        b, d = probe3(nm + '_kernel', kind, n)
        open(out + f'l_{nm}.s', 'w').write(variant([f'; @launch kernel={nm}_kernel grid=(256,1,1) block=(256,1,1) lds=163840', main], b, d))
```

```python
import re

REG = re.compile(r'(?<![\w.])(-?)(?:abs\()?([vs])(?:(\d+)|\[(\d+):(\d+)\])')
TRANS = ('v_exp_f32', 'v_log_f32', 'v_rcp_f32', 'v_rsq_f32', 'v_sqrt_f32', 'v_sin_f32', 'v_cos_f32')

def regs_of(op):
    op = op.strip()
    if op in ('vcc', 'exec'): return {op}
    if op == 'm0': return {'m0'}
    m = REG.match(op)
    if not m: return set()
    k = m.group(2)
    if m.group(3) is not None: return {k + m.group(3)}
    return {k + str(i) for i in range(int(m.group(4)), int(m.group(5)) + 1)}

class Ins:
    def __init__(self, text):
        self.text = text
        t = text.split(';')[0].strip()
        self.is_label = t.endswith(':')
        self.is_dir = t.startswith('.')
        self.op = t.split()[0] if t else ''
        self.w = set(); self.r = set(); self.kind = 'other'; self.states = 1
        self.mfma_c = set(); self.mfma_ab = set(); self.passes = 0; self.dpp = False; self.ldsm0 = False; self.stdata = set()
        if self.is_label or self.is_dir or not t:
            self.states = 0; self.kind = 'none'; return
        rest = t[len(self.op):].strip()
        ops = [o.strip() for o in re.split(r',(?![^\[]*\])', rest)] if rest else []
        mods = ''
        if ops:
            parts = ops[-1].split(None, 1)
            ops[-1] = parts[0]
            mods = parts[1] if len(parts) > 1 else ''
        self.mods = mods
        R = [regs_of(o) for o in ops]
        op = self.op
        allr = lambda l: set().union(*l) if l else set()
        if op == 's_nop':
            self.states = int(ops[0], 0) + 1; self.kind = 'nop'
        elif op.startswith('v_mfma'):
            self.kind = 'mfma'; self.w = R[0]; self.mfma_ab = R[1] | R[2]; self.mfma_c = R[3]; self.r = self.mfma_ab | self.mfma_c
            self.passes = 8 if '32x32x16' in op else 4 if '16x16x32' in op else None
            assert self.passes, op
        elif op.startswith('v_'):
            self.kind = 'valu'
            self.dpp = '_dpp' in op
            if 'swap' in op:
                self.w = R[0] | R[1]; self.r = set(self.w)
            elif op.startswith(('v_add_co', 'v_sub_co', 'v_addc_co')):
                self.w = R[0] | R[1]; self.r = allr(R[2:])
            else:
                self.w = R[0]; self.r = allr(R[1:])
                if op.startswith(('v_fmac', 'v_dot2c', 'v_writelane')) or self.dpp: self.r |= R[0]
        elif op.startswith('ds_'):
            self.kind = 'ds'
            if op.startswith('ds_read'): self.w = R[0]; self.r = allr(R[1:])
            else: self.r = allr(R)
            if 'addtid' in op: self.ldsm0 = True
        elif op.startswith(('buffer_', 'global_')):
            self.kind = 'vmem'
            lds = bool(re.search(r'\blds\b', mods))
            if 'load' in op and not lds: self.w = R[0]; self.r = allr(R[1:])
            else: self.r = allr(R)
            if lds: self.ldsm0 = True
            if 'store' in op and ('x4' in op or 'x3' in op):
                self.stdata = R[0] if op.startswith('buffer_') else R[1]
        elif op.startswith('s_'):
            self.kind = 'salu'
            if op.startswith(('s_cmp', 's_waitcnt', 's_barrier', 's_branch', 's_cbranch', 's_endpgm', 's_sleep', 's_setprio', 's_bitcmp')):
                self.r = allr(R)
            else:
                self.w = R[0] if R else set(); self.r = allr(R[1:])
                if 'saveexec' in op: self.w = self.w | {'exec'}

def need(p, c):
    n = 0
    vw = {x for x in p.w if x[0] == 'v' and x != 'vcc'}
    sw = p.w - vw
    if p.kind == 'valu':
        if c.kind == 'mfma' and vw & c.r: n = max(n, 2)
        if c.kind == 'valu':
            if (c.dpp or 'permlane' in c.op) and vw & c.r: n = max(n, 2)
            if c.op.startswith(('v_readlane', 'v_readfirstlane')) and vw & c.r: n = max(n, 1)
            if p.op.split('_e')[0] in TRANS or p.op in TRANS:
                if vw & c.r and c.op not in TRANS: n = max(n, 1)
                if vw & c.r: n = max(n, 1)
            if sw & c.r:
                n = max(n, 4 if c.op.startswith(('v_readlane', 'v_writelane')) else 2)
        if c.kind == 'vmem' and sw & c.r: n = max(n, 5)
        if c.kind == 'salu' and sw & c.r: n = max(n, 1)
        if c.op.startswith('s_cbranch_vcc') and 'vcc' in sw: n = max(n, 1)
    if p.kind == 'mfma':
        big = {4: 8, 8: 12}[p.passes]
        if c.kind == 'mfma':
            if p.w & c.mfma_ab: n = max(n, big)
            if p.w & c.mfma_c and not (p.w == c.mfma_c and p.passes == c.passes): n = max(n, big - 2)
            if p.w & c.w and not (p.w & c.mfma_c): n = max(n, big)
        elif c.kind in ('valu', 'ds', 'vmem'):
            if p.w & (c.r | c.w): n = max(n, big)
            if c.kind == 'valu' and p.mfma_c & c.w: n = max(n, {4: 3, 8: 7}[p.passes])
    if p.kind == 'salu' and 'm0' in p.w and c.ldsm0: n = max(n, 1)
    if p.stdata & c.w: n = max(n, 2 if c.kind in ('valu', 'mfma') else 1)
    return n

class Prog:
    def __init__(self):
        self.ins = []; self.uid = 0; self.nops = 0
        self.vm = []; self.lg = []
    def label(self, base='L'):
        self.uid += 1
        return f'{base}_{self.uid}'
    def _required(self, hist, c):
        d = 0; req = 0
        for p in reversed(hist):
            if p.op in ('s_branch', 's_endpgm'): break
            req = max(req, need(p, c) - d)
            d += p.states
            if d >= 20: break
        return req
    def capture(self, fn):
        self._cap = []
        fn()
        L, self._cap = self._cap, None
        return L
    def __call__(self, text, tag=None):
        if getattr(self, '_cap', None) is not None:
            self._cap += [l.strip() for l in text.split('\n') if l.strip()]
            return
        for l in text.split('\n'):
            l = l.strip()
            if not l: continue
            c = Ins(l)
            if c.kind != 'none':
                req = self._required(self.ins, c)
                if req > 0:
                    self.ins.append(Ins(f's_nop {req-1}')); self.nops += req
            self.ins.append(c)
            if c.kind == 'vmem': self.vm.append(tag)
            if c.kind == 'ds': self.lg.append(tag)
            if c.op == 's_waitcnt':
                m = re.search(r'vmcnt\((\d+)\)', l)
                if m:
                    n = int(m.group(1)); k = len(self.vm)
                    while k > 0 and n > 0:
                        k -= 1
                        if not (isinstance(self.vm[k], str) and self.vm[k].startswith('~')): n -= 1
                    self.vm = self.vm[k:]
                m = re.search(r'lgkmcnt\((\d+)\)', l)
                if m: n = int(m.group(1)); self.lg = self.lg[len(self.lg) - n:] if n < len(self.lg) else self.lg
    def _cnt(self, q, tags):
        if not isinstance(tags, (list, tuple, set)): tags = [tags]
        last = -1
        for i, t in enumerate(q):
            if t in tags: last = i
        return None if last < 0 else sum(1 for t in q[last + 1:] if not (isinstance(t, str) and t.startswith('~')))
    def wait(self, vm=None, lg=None):
        parts = []
        if vm is not None:
            n = self._cnt(self.vm, vm)
            if n is not None: parts.append(f'vmcnt({min(n, 63)})')
        if lg is not None:
            n = self._cnt(self.lg, lg)
            if n is not None: parts.append(f'lgkmcnt({min(n, 15)})')
        if parts: self('s_waitcnt ' + ' '.join(parts))
    def check_edges(self):
        labels = {i.text.split(';')[0].strip()[:-1]: k for k, i in enumerate(self.ins) if i.is_label}
        bad = []
        for k, i in enumerate(self.ins):
            if i.op.startswith(('s_branch', 's_cbranch')):
                tgt = i.text.split(';')[0].split()[-1]
                hist = [x for x in self.ins[max(0, k - 40):k]]
                for z in range(len(hist) - 1, -1, -1):
                    if hist[z].op in ('s_branch', 's_endpgm'): hist = hist[z + 1:]; break
                hist = hist + [Ins('s_nop 0')]
                d = 0
                for c in self.ins[labels[tgt]:labels[tgt] + 40]:
                    if c.kind != 'none':
                        if self._required(hist, c) > 0: bad.append((i.text, c.text))
                        if c.op in ('s_branch', 's_endpgm'): break
                    hist.append(c); d += c.states
                    if d >= 20: break
        return bad
    def text(self):
        out = []
        for i in self.ins:
            out.append(i.text if i.is_label else '    ' + i.text)
        return '\n'.join(out) + '\n'


import subprocess, tempfile, os
def inst_sizes(p):
    body = '\n'.join(i.text for i in p.ins if not i.is_dir)
    src = '.amdgcn_target "amdgcn-amd-amdhsa--gfx950"\n.text\n' + body + '\n'
    d = tempfile.mkdtemp()
    open(d + '/a.s', 'w').write(src)
    r = subprocess.run(['clang', '-x', 'assembler', '-target', 'amdgcn-amd-amdhsa', '-mcpu=gfx950', '-c', d + '/a.s', '-o', d + '/a.o'], capture_output=True, text=True)
    assert r.returncode == 0, r.stderr[:2000]
    o = subprocess.run(['llvm-objdump', '-d', '--mcpu=gfx950', d + '/a.o'], capture_output=True, text=True).stdout
    sz = []
    for l in o.split('\n'):
        m = re.search(r'//\s+[0-9A-F]+:((?:\s+[0-9A-F]{8})+)', l)
        if m: sz.append(4 * len(m.group(1).split()))
    out = []; k = 0
    for i in p.ins:
        if i.kind == 'none': out.append(0)
        else: out.append(sz[k]); k += 1
    assert k == len(sz), (k, len(sz))
    return out

NOPROMO = ('v_readfirstlane', 'v_permlane', 'v_readlane', 'v_writelane', 'v_mov_b64', 'v_fmac', 'v_cmp', 'v_cndmask', 'v_dot2c', 'v_nop')
def align8(p, minrun=3):
    sz = inst_sizes(p)
    new = []; nsz = []; off = 0; promoted = padded = left = 0
    n = len(p.ins)
    for k, i in enumerate(p.ins):
        if i.is_dir: continue
        if sz[k] == 8 and off % 8 == 4 and k >= getattr(p, 'noalign', 0):
            z = len(new) - 1; done = False
            while z >= getattr(p, 'noalign', 0) and nsz[z] in (0, 4):
                c = new[z]
                if nsz[z] == 4 and c.kind == 'valu' and not c.op.startswith(NOPROMO) and not c.op.endswith(('_e32', '_e64')):
                    t = c.text.strip()
                    c2 = Ins(c.op + '_e64' + t[len(c.op):]); c2.op = c.op
                    new[z] = c2; nsz[z] = 8; off += 4; promoted += 1; done = True
                    break
                z -= 1
            if not done:
                run = 0; z = k
                while z < n and sz[z] in (0, 8):
                    run += sz[z] == 8; z += 1
                if run >= minrun:
                    new.append(Ins('s_nop 0')); nsz.append(4); off += 4; padded += 1
                else: left += 1
        new.append(i); nsz.append(sz[k]); off += sz[k]
    p.ins = new
    return promoted, padded, left, off
```

```python
import sys, struct, math
sys.path.insert(0, 'tools')
from asmlib import NAME, file_text
from prog import Prog, align8

WS_GEN = 0x0
WS_RS = 0x10000
WS_CS = 0x20000
WS_KVP = 0x80000
WS_ZP = 0x100000
WS_K2 = 0x110000
WS_FKV = 0x120000
WS_FO = 0x180000
WS_FH = 0x140000
WS_A2 = 0x200000
WS_STAMP = 0x8000000
A2_RH = 60 * 4096
SLOT = 40960
LAYER = 16384
MISC = 147456
L_WS = MISC; L_ZERO = MISC + 3072; L_XS = MISC + 4096; L_RS2 = MISC + 6144; L_WPHI = MISC + 7168
L_KV = MISC + 9216; L_Z = MISC + 13312; L_NONCE = MISC + 13568
LAYERS = [8, 5, 6, 7, 0, 1, 2, 3, 4, 9]
SPIN = 200000

def f32(x): return '0x%08x' % struct.unpack('<I', struct.pack('<f', x))[0]
LOG2E = 1.4426950408889634
GK1 = -2.0 * math.sqrt(2.0 / math.pi) * LOG2E

SX, SW, SWS, SW2, SWO, SOUT, SAUX, SB2 = 8, 12, 16, 20, 24, 28, 32, 36
def srd(n): return f's[{n}:{n+3}]'
(RB, GL, TYPE, GRP, XC, RL, WV, J, NONCE, SLC, XM, HALF, WSTR, COLB, RH2, G16, GID, USTART, SIX, ROT) = range(60, 80)
ST0, ST1, CB7, UB = 44, 45, 51, 56

def vr(a, n=1): return f'v{a}' if n == 1 else f'v[{a}:{a+n-1}]'

OPTS = dict(prof='', order='lead', dbg='', ntx='', ntw='', rot2=3, thr=3, e0=7, e1=8, ft=1, slp=6, part=7, rw=32, thr2=3, gpos=0, plan2=1,
            optp=0, sk=1, so=1, gk=0, go=0, plain=1, g1=3, p3=2, cpf=1, dq=1, g3=0, g3r=4, st='', cf=1, cf1=1, pk0=1, ksl=0, l2=1, e1p=3, wr_=0, wf=1, vt1=0, vt2=5, hp=3, gt=6, nt_=15, spb=4, sp0=0, bta='6a7', btf='6a7', kvt='a', finc=2, dens=0, zc=1, chf='', pa=0, pb=0, skew=0, of='sc1', af='sc1', bf='', hf_='sc1', bg=11, wl=1, athr=0, flp=2, partn=2, part2=7, tr=0, sp=2, peel=1, pre1=0, hp2=3, chs='1111', pre0=250, cvt=0, pft='66aa', hv=1, thin=1, ord2=0, qm=1, dcq=1, p0=2, wj=0, l2p='x', l2q=1, l2t='x', r1p=1, nl_=10, bce=0, pp4=0, dthr=0, hpa=0, lrot=1)
def gen(**kw):
    o_ = dict(OPTS, **kw); globals().update(o_)
    globals()['A2_RH'] = 60 * 4096 + skew
    p = Prog()
    nostamp = [False]
    names = st.split(',') if st else []
    def mark(name):
        if name in names: stamp(1 + names.index(name), True)
    def stamp(i, force=False):
        if prof and not nostamp[0] and (force or i in (0, 10) or (prof != 'min' and not names)):
            if prof == 'mix' and 1 <= i <= 4: p(f's_memtime s[{88+2*i}:{89+2*i}]')
            p(f"{'s_memtime' if prof == 'cyc' else 's_memrealtime'} s[{80+2*i}:{81+2*i}]")
            if i: p('s_waitcnt lgkmcnt(0)')
    def mfma16(d, a, b, c=None):
        p(f'v_mfma_f32_16x16x32_bf16 {vr(d,4)}, {vr(a,4)}, {vr(b,4)}, {vr(d,4) if c is None else c}')
    def mfma32(d, a, b, c=None):
        p(f'v_mfma_f32_32x32x16_bf16 {vr(d,16)}, {vr(a,4)}, {vr(b,4)}, {vr(d,16) if c is None else c}')
    nopk = [False]
    def add2(d, a, b):
        if nopk[0]: p(f'v_add_f32 v{d}, v{a}, v{b}\nv_add_f32 v{d+1}, v{a+1}, v{b+1}')
        else: p(f'v_pk_add_f32 {vr(d,2)}, {vr(a,2)}, {vr(b,2)}')
    def mul2s(d, a, s_):
        if nopk[0]: p(f'v_mul_f32 v{d}, v{a}, v{s_}\nv_mul_f32 v{d+1}, v{a+1}, v{s_}')
        else: p(f'v_pk_mul_f32 {vr(d,2)}, {vr(a,2)}, {vr(s_,2)} op_sel_hi:[1,0]')
    def fma2s(d, a, s1, s2, n0, n2):
        if nopk[0]:
            for h in range(2): p(f"v_fma_f32 v{d+h}, {'-' * n0}v{a+h}, v{s1}, {'-' * n2}v{s2}")
        else: p(f'v_pk_fma_f32 {vr(d,2)}, {vr(a,2)}, {vr(s1,2)}, {vr(s2,2)} op_sel_hi:[1,0,0] neg_lo:[{n0},0,{n2}] neg_hi:[{n0},0,{n2}]')
    def mksrd(d, base, size):
        if base is not None: p(f's_mov_b64 s[{d}:{d+1}], s[{base}:{base+1}]')
        p(f's_mov_b32 s{d+2}, {size}\ns_mov_b32 s{d+3}, 0x20000')
    def poll(vaddr, soff, nl, vtmp, imm=0):
        lp = p.label('L_poll'); ld = p.label('L_polld')
        p(f's_mov_b64 exec, {hex((1 << nl) - 1)}\ns_mov_b32 s7, 0')
        p(f'{lp}:')
        p(f'buffer_load_dword v{vtmp}, v{vaddr}, {srd(SWS)}, s{soff} offen offset:{imm} sc1')
        p(f's_add_u32 s7, s7, 1\ns_cmp_gt_u32 s7, {SPIN}\ns_cbranch_scc1 {ld}')
        p('s_waitcnt vmcnt(0)')
        p(f'v_cmp_ne_u32 vcc, s{NONCE}, v{vtmp}')
        if 'xfl' in dbg and nl == 4: pass
        elif slp:
            p(f's_cbranch_vccz {ld}\ns_sleep {slp}\ns_branch {lp}')
        else:
            p(f's_cbranch_vccnz {lp}')
        p(f'{ld}:')
        p('s_waitcnt vmcnt(0)\ns_mov_b64 exec, -1')
    def setflag(soff, vaddr, vval, mask=1, imm=0):
        p(f's_mov_b64 exec, {mask}')
        p(f'buffer_store_dword v{vval}, v{vaddr}, {srd(SWS)}, s{soff} offen offset:{imm} sc1', 'flag')
        p('s_mov_b64 exec, -1')

    def lineflag(soff, vaddr4, vval, imm=0):
        p('s_mov_b32 exec_hi, 0')
        p(f'buffer_store_dword v{vval}, v{vaddr4}, {srd(SWS)}, s{soff} offen offset:{imm} sc1', 'flag')
        p('s_mov_b32 exec_hi, -1')

    p('L_start:')
    stamp(0)
    VX, VW, VF = 8, 12, 20
    p(f's_load_dwordx16 s[40:55], s[0:1], 0\ns_load_dwordx2 s[{SWS}:{SWS+1}], s[0:1], 88')
    p('s_cmpk_ge_u32 s2, 0x100\ns_cbranch_scc1 L_end')
    p(f'v_readfirstlane_b32 s{WV}, v0\nv_and_b32 v0, 63, v0\ns_lshr_b32 s{WV}, s{WV}, 6')
    p(f's_getpc_b64 s[4:5]\ns_and_b32 s6, s2, 56\ns_add_u32 s6, s6, s{WV}\ns_lshl_b32 s6, s6, 7\nv_lshl_add_u32 v1, v0, 13, s6\ns_mov_b64 exec, 15')
    p('global_load_dword v216, v1, s[4:5]', 'pf')
    p('s_mov_b64 exec, -1')
    for w in range(3):
        if tr >> w & 1: p(f's_cmp_eq_u32 s{WV}, {4+w}\ns_cbranch_scc1 L_T{w}')
    p(f's_cmp_ge_u32 s{WV}, 4\ns_cbranch_scc1 L_C')
    p(f's_and_b32 s7, s2, 6\ns_lshr_b32 s{RL}, s2, 6\ns_lshl1_add_u32 s{RB}, s7, s{RL}')
    p(f's_lshr_b32 s{GL}, s2, 3\ns_add_u32 s{XM}, s{RL}, s{GL}\ns_and_b32 s3, s{XM}, {0 if order[0] == "z" else 1}\ns_or_b32 s3, s3, s7\ns_lshl2_add_u32 s3, s2, s3\ns_and_b32 s3, s3, 7')
    p(f's_lshl2_add_u32 s5, s{RB}, s{WV}\ns_lshl_b32 s5, s5, 8\ns_add_u32 s5, s5, s3\ns_lshl_b32 s5, s5, 7\ns_add_u32 s6, s5, {2*7168}')
    p(f'v_lshrrev_b32 v2, 3, v0\nv_lshrrev_b32 v4, 4, v0\nv_xor_b32 v4, v4, v0\nv_and_b32 v4, 7, v4\nv_lshlrev_b32 v4, 4, v4\nv_lshl_add_u32 v{VX}, v2, 10, v4')
    p(f'v_xor_b32 v{VX+1}, 64, v{VX}\nv_add_u32 v{VX+1}, 7168, v{VX+1}')
    p(f's_lshl_b32 s{SX+2}, 1, 21\ns_mov_b32 s{SX+3}, 0x20000\ns_lshl_b32 m0, s{WV}, 12')
    p(f's_waitcnt lgkmcnt(0)\ns_mov_b64 s[{SX}:{SX+1}], s[40:41]')
    for i in range(4):
        p(f'buffer_load_dwordx4 v{VX+(i&1)}, {srd(SX)}, s{5+(i>>1)} offen offset:{1024*i} {ntx} lds', 'S0')
    p('L_entry_end:')
    p.noalign = len(p.ins)
    def tramp(w):
        if tr >> w & 1: p(f's_branch L_Ts{w}\nL_T{w}:\ns_branch L_C\nL_Ts{w}:')
    def ids_mid():
        p(f's_and_b32 s{GL}, s{GL}, 7\ns_and_b32 s{XC}, s2, 1\ns_and_b32 s{TYPE}, s{GL}, 1\ns_and_b32 s{J}, s{WV}, 3')
        p(f's_lshr_b32 s{GRP}, s{GL}, 1\ns_lshl2_add_u32 s{GRP}, s{XC}, s{GRP}')
        p(f's_add_u32 s6, s{GRP}, 1\ns_lshr_b32 s6, s6, 1\ns_min_u32 s6, s6, 3\ns_mul_i32 s{USTART}, s{GRP}, 5\ns_add_u32 s{USTART}, s{USTART}, s6')
        p(f's_lshr_b32 s{SIX}, 0x15, s{GRP}\ns_and_b32 s{SIX}, s{SIX}, 1')

    def ids_late():
        p(f's_lshl_b32 s{RH2}, s{RB}, 1\ns_add_u32 s{RH2}, s{RH2}, s{XC}')
        p(f's_lshl_b32 s{G16}, s{XC}, 3\ns_add_u32 s{G16}, s{G16}, s{GL}')
        p(f's_lshl_b32 s{GID}, s{TYPE}, 3\ns_add_u32 s{GID}, s{GID}, s{GRP}')
        if rot2 < 4:
            p(f's_and_b32 s{ROT}, s{RL}, {rot2}')
        elif rot2 == 6: p(f's_bfe_u32 s{ROT}, s2, 0x20001')
        elif rot2 == 7: p(f's_and_b32 s{ROT}, s2, 3')
        elif rot2 == 8: p(f's_and_b32 s{ROT}, s2, 2\ns_and_b32 s5, s{RL}, 1\ns_or_b32 s{ROT}, s{ROT}, s5')
        elif rot2 == 9: p(f's_and_b32 s{ROT}, s2, 1\ns_and_b32 s5, s{RL}, 2\ns_or_b32 s{ROT}, s{ROT}, s5')
        else:
            p(f's_lshl_b32 s{ROT}, s{RL}, 1\ns_add_u32 s{ROT}, s{ROT}, s{GL}\ns_and_b32 s{ROT}, s{ROT}, 2')
            if rot2 == 5: p(f's_lshr_b32 s5, s{RL}, 1\ns_or_b32 s{ROT}, s{ROT}, s5')
    def srds_late():
        mksrd(SW2, 54, 1376 * 1024); mksrd(SWO, 46, 512 * 1024); mksrd(SOUT, None, 2048 * 1024); mksrd(SB2, None, 1024)
    def blk_setup():
        p(f's_mul_i32 s{ST0}, s{J}, 11\ns_cmp_eq_u32 s{J}, 3\ns_cselect_b32 s5, 5, 6\ns_add_u32 s{ST1}, s{ST0}, s5\ns_lshl_b32 s{CB7}, s{GL}, 7')
        for i in range(4):
            p(f's_xor_b32 s5, s{ROT}, {i}\ns_and_b32 s6, s5, 1\ns_cmp_ge_u32 s5, 2\ns_cselect_b32 s5, s{ST1}, s{ST0}\ns_add_u32 s{UB+i}, s5, s6')
    def blk_idx(i):
        if i < 8: p(f's_add_u32 s6, s{UB+(i&3)}, {2*(i>>2)}')
        elif i == 8: p(f's_add_u32 s6, s{ST0}, 4')
        elif i == 9: p(f's_add_u32 s6, s{ST1}, 4')
        elif i == 10: p(f's_add_u32 s6, s{ST0}, 5')
        else: p(f's_xor_b32 s6, s{ROT}, {i-11}\ns_lshl2_add_u32 s6, s{J}, s6')
    def b2_addr(vF, vO, t):
        p(f'v_lshrrev_b32 v{t}, 3, v0\nv_and_b32 v{t+1}, 7, v0')
        p(f'v_and_b32 v{t+2}, 2, v{t}\nv_xor_b32 v{t+1}, v{t+1}, v{t+2}\nv_lshlrev_b32 v{t+1}, 4, v{t+1}')
        p(f'v_lshrrev_b32 v{t+2}, 2, v{t}\nv_and_b32 v{t+3}, 3, v{t}\nv_lshl_add_u32 v{t+2}, v{t+2}, 4, v{t+3}')
        p(f'v_lshl_add_u32 v{vF}, v{t+2}, 10, v{t+1}')
        if vO is not None: p(f'v_lshl_add_u32 v{vO}, v{t}, 10, v{t+1}')
        for rg in range(1, 4):
            for (vb, step) in ((vF, 3072), (vO, 7168)):
                if vb is None: continue
                if rg & 1:
                    p(f'v_xor_b32 v{vb+rg}, 64, v{vb}\nv_add_u32 v{vb+rg}, {step*rg}, v{vb+rg}')
                else:
                    p(f'v_add_u32 v{vb+rg}, {step*rg}, v{vb}')
    J12 = 42
    def b2_dma(i, vF, vO, tag, lim=None):
        p(f's_add_u32 m0, s{J12}, {LAYERS[i % nl_]*LAYER}')
        blk_idx(i)
        p(f's_lshl_b32 s6, s6, 15' + ('' if 'xb2' in dbg else f'\ns_add_u32 s6, s6, s{CB7}'))
        v, sr = (vF, SW2) if i < 11 else (vO, SWO)
        for rg in range(4):
            if lim and len(p.vm) >= lim: p(f's_waitcnt vmcnt({lim-1})')
            p(f'buffer_load_dwordx4 v{v+rg}, {srd(sr)}, s6 offen offset:{1024*rg} {bf} lds', tag)
    FINX, FINB, FINA, FINR = 240, 244, 248, 255
    POLA, POLT, LN16, VNON = 232, 235, 251, 1
    def final_addr(t):
        p(f'v_lshrrev_b32 v{t}, 3, v0\nv_and_b32 v{t+1}, 7, v0\nv_lshlrev_b32 v{FINA+1}, 4, v{t+1}')
        p(f'v_lshl_add_u32 v{FINA}, v{t}, 10, v{FINA+1}')
        p(f's_lshl_b32 s5, s{RH2}, 16\ns_lshl_b32 s6, s{WV}, 13\ns_add_u32 s5, s5, s6\ns_add_u32 s5, s5, s{CB7}')
        p(f'v_add_u32 v{FINA}, s5, v{FINA}')
        if rw != 32:
            p(f'v_lshlrev_b32 v{t+1}, 1, v{t+1}\nv_xor_b32 v{t+1}, v{t+1}, v{t}\nv_lshlrev_b32 v{t+1}, 4, v{t+1}\nv_lshl_add_u32 v{t}, v{t}, 8, v{t+1}')
            p(f's_lshr_b32 s5, s{WV}, 1\ns_lshl_b32 s5, s5, 14\ns_and_b32 s6, s{WV}, 1\ns_lshl_b32 s6, s6, 11\ns_add_u32 s5, s5, s6\ns_add_u32 s5, s5, {2*LAYER}')
            p(f'v_add_u32 v{FINR}, s5, v{t}')
        else:
            p(f's_lshr_b32 s5, s{WV}, 1\ns_lshl_b32 s5, s5, 15\ns_and_b32 s6, s{WV}, 1\ns_lshl_b32 s6, s6, 7\ns_add_u32 s5, s5, s6')
            p(f'v_lshrrev_b32 v{t}, 5, v0\nv_lshl_add_u32 v{FINR}, v{t}, 6, s5')
            for bit, mul in ((0, 32), (1, 272), (2, 768), (3, 1344), (4, LAYER + 128)):
                p(f'v_bfe_u32 v{t}, v0, {bit}, 1\nv_mul_u32_u24 v{t}, {mul}, v{t}\nv_add_u32 v{FINR}, v{FINR}, v{t}')
        p(f'v_lshlrev_b32 v{POLA}, 7, v0')
    def final_loads():
        p(f'buffer_load_dwordx4 {vr(FINX,4)}, v{FINA}, {srd(SX)}, 0 offen', 'fin')
        p(f'buffer_load_dwordx4 {vr(FINB,4)}, v{FINA+1}, {srd(SB2)}, s{CB7} offen', 'fin')
    FLH, FLO = 49, 70
    def flag_base():
        p(f's_lshl_b32 s{FLH}, s{RH2}, 13\ns_lshl_b32 s5, s{J}, 9\ns_add_u32 s{FLH}, s{FLH}, s5\ns_add_u32 s{FLH}, s{FLH}, {WS_FH}')
        p(f's_lshl_b32 s{FLO}, s{RH2}, 12\ns_lshl_b32 s5, s{J}, 10\ns_add_u32 s{FLO}, s{FLO}, s5\ns_add_u32 s{FLO}, s{FLO}, {WS_FO}')
    def fl_addr(r):
        if r < 3: p(f's_add_u32 s4, s{FLH}, {2048*r}'); return 4, 4
        if r == 3: return FLO, 8
        return 43, 16
    def poll_round(r):
        so_, nl = fl_addr(r); poll(POLA, so_, nl, POLT)
    def prepoll(r):
        so_, nl = fl_addr(r)
        p(f's_mov_b64 exec, {hex((1 << nl) - 1)}')
        p(f'buffer_load_dword v{POLT}, v{POLA}, {srd(SWS)}, s{so_} offen sc1', f'P{r}')
        p('s_mov_b64 exec, -1')
    def chkpoll(r):
        l = p.label('L_pk')
        p.wait(vm=f'P{r}')
        p(f'v_cmp_ne_u32 vcc, s{NONCE}, v{POLT}\ns_and_b64 vcc, vcc, {hex((1 << (4, 4, 4, 8, 16)[r]) - 1)}\ns_cbranch_scc0 {l}')
        sv = list(p.vm)
        poll_round(r)
        p.vm = sv
        p(f'{l}:')
    def wphi_frags(addr, A0, A1, t):
        p(f'ds_read_b64_tr_b16 {vr(A1,2)}, v{addr}\nds_read_b64_tr_b16 {vr(A1+2,2)}, v{addr} offset:128', 'wphi')
    def wphi_mask(A0, A1, t):
        p(f'v_and_b32 v{t}, 4, v0\nv_cmp_eq_u32 vcc, 0, v{t}')
        p.wait(lg='wphi')
        for i in range(4): p(f'v_cndmask_b32 v{A0+i}, 0, v{A1+i}, vcc')
        for i in range(4): p(f'v_cndmask_b32 v{A1+i}, v{A1+i}, 0, vcc')
    def wphi_addr(dst, t, pair):
        p(f'v_lshrrev_b32 v{t}, 5, v0\nv_bfe_u32 v{t+1}, v0, 2, 2\nv_lshl_add_u32 v{t}, v{t}, 3, v{t+1}\nv_lshlrev_b32 v{dst}, 5, v{t}')
        p(f'v_bfe_u32 v{t}, v0, 4, 1\nv_bfe_u32 v{t+1}, v0, 1, 1\nv_lshl_add_u32 v{t}, v{t}, 1, v{t+1}\nv_lshl_add_u32 v{dst}, v{t}, 3, v{dst}')
        if pair:
            p(f'v_and_b32 v{t}, 1, v0\nv_lshl_add_u32 v{dst}, v{t}, 9, v{dst}\ns_and_b32 s5, s{J}, 1\ns_lshl_b32 s5, s5, 10')
        else:
            p(f's_lshl_b32 s5, s{J}, 9')
        p(f's_and_b32 s6, s{GRP}, 1' + ('' if pair else '\ns_xor_b32 s6, s6, 1') + f'\ns_lshl_b32 s6, s6, 11\ns_add_u32 s5, s5, s6')
        p(f's_add_u32 s5, s5, {L_WPHI}\nv_add_u32 v{dst}, s5, v{dst}')
    def softmax(D, EP, S, c, t, outreg, mid=None):
        m = t + 2
        p(f'v_max3_f32 v{m}, v{D}, v{D+1}, v{D+2}\nv_min3_f32 v{t}, v{D}, v{D+1}, v{D+2}')
        for i in range(3, 15, 2):
            p(f'v_max3_f32 v{m}, v{m}, v{D+i}, v{D+i+1}\nv_min3_f32 v{t}, v{t}, v{D+i}, v{D+i+1}')
        p(f'v_max_f32 v{m}, v{m}, v{D+15}\nv_min_f32 v{t}, v{t}, v{D+15}')
        p(f'v_mul_f32 v{m}, v{m}, v{c}\nv_mul_f32 v{t}, v{t}, v{c}')
        for i in range(8):
            fma2s(EP + 2*i, D + 2*i, c, m, 0, 1)
            fma2s(D + 2*i, D + 2*i, c, t, 1, 0)
        mid = list(mid or [])
        every = max(1, 32 // max(1, len(mid)))
        for i in range(32):
            r = EP + i if i < 16 else D + i - 16
            p(f'v_exp_f32 v{r}, v{r}')
            if mid and i % every == every - 1: mid.pop(0)()
        for m in mid: m()
        for sign, E in enumerate((EP, D)):
            add2(S+4*sign, E, E+2); add2(S+4*sign+2, E+4, E+6)
        for i in range(4, 8):
            for sign, E in enumerate((EP, D)):
                d = S + 4 * sign + 2 * (i & 1)
                add2(d, d, E+2*i)
        for sign in range(2): add2(S+4*sign, S+4*sign, S+4*sign+2)
        for sign in range(2): p(f'v_add_f32 v{S+4*sign}, v{S+4*sign}, v{S+4*sign+1}')
        for sign in range(2): p(f'v_rcp_f32 v{S+4*sign}, v{S+4*sign}')
        for sign, E in enumerate((EP, D)):
            for i in range(8):
                mul2s(E+2*i, E+2*i, S+4*sign)
            for i in range(8):
                p(f'v_cvt_pk_bf16_f32 v{outreg(sign, i)}, v{E+2*i}, v{E+2*i+1}')
                yield_ = getattr(outreg, 'after', None)
                if yield_: yield_(sign, i)
    def final_part(t):
        for i in range(4):
            p(f'v_lshlrev_b32 v{t+2*i}, 16, v{FINX+i}\nv_and_b32 v{t+1+2*i}, 0xffff0000, v{FINX+i}')
            p(f'v_lshlrev_b32 v{t+8+2*i}, 16, v{FINB+i}\nv_and_b32 v{t+9+2*i}, 0xffff0000, v{FINB+i}')
        for i in range(4): add2(FINX+2*i, t+2*i, t+8+2*i)
    def final_sum():
        for w in range(4):
            for i in range(2): p(f'ds_read_b128 {vr(104+8*w+4*i,4)}, v{FINR} offset:{4096*w+16*i}', f'r{w}')
        for w in range(4):
            p.wait(lg=f'r{w}')
            for i in range(4): add2(FINX+2*i, FINX+2*i, 104+8*w+2*i)
        for i in range(4): p(f'v_cvt_pk_bf16_f32 v{16+i}, v{FINX+2*i}, v{FINX+1+2*i}')
        p(f'buffer_store_dwordx4 v[16:19], v{FINA}, {srd(SOUT)}, 0 offen ' + of.replace('_', ' '))

    nopk[0] = bool(plain)
    p(f's_load_dwordx2 s[{SB2}:{SB2+1}], s[0:1], 64\ns_load_dwordx2 s[{SOUT}:{SOUT+1}], s[0:1], 72')
    ids_mid()
    mark('h_x')
    tramp(0)
    p(f's_lshl_b32 s{COLB}, s{USTART}, 6\ns_xor_b32 s6, s{GRP}, 1\ns_lshl_b32 s6, s6, 7\ns_movk_i32 s{WSTR}, 2752\ns_movk_i32 s4, 128')
    p(f's_and_b32 s7, s{GRP}, 1\ns_lshl_b32 s7, s7, 8\ns_addk_i32 s7, 896')
    p(f's_cmp_eq_u32 s{TYPE}, 0')
    p(f's_cselect_b32 s{COLB}, s6, s{COLB}\ns_cselect_b32 s{WSTR}, 3072, s{WSTR}\ns_cselect_b32 s7, s7, s4\ns_cselect_b32 s4, 1024, s4\ns_cselect_b32 s{SIX}, 1, s{SIX}')
    p(f's_cselect_b32 s{SW}, s42, s50\ns_cselect_b32 s{SW+1}, s43, s51\ns_mov_b32 s{SW+3}, 0x20000\ns_lshl_b32 s{SW+2}, s{WSTR}, 9')
    SXB, SWB, J11, W64 = 0, 1, 71, USTART
    p(f'v_and_b32 v3, 7, v0\nv_and_b32 v4, 2, v2\nv_xor_b32 v4, v4, v3\nv_mul_u32_u24 v5, s{WSTR}, v2')
    p(f's_lshl_b32 s5, s{J}, 4\ns_mul_i32 s{SWB}, s5, s{WSTR}\ns_add_u32 s{SWB}, s{SWB}, s{COLB}\ns_lshl_b32 s{W64}, s{WSTR}, 6')
    p(f's_mul_i32 s6, s3, s{W64}\ns_add_u32 s6, s6, s{SWB}\ns_lshl_b32 s{J11}, s{J}, 11\ns_lshl_b32 s5, s{WSTR}, 3\ns_sub_u32 s5, s5, 1024')
    p(f'v_lshl_add_u32 v{VW}, v4, 4, v5\nv_xor_b32 v3, 4, v4\nv_add_u32 v5, s5, v5\nv_lshl_add_u32 v{VW+1}, v3, 4, v5')
    stamp(1)
    def w0(u):
        for par in range(2): p(f'buffer_load_dwordx4 v{VW+2*u+par}, {srd(SW)}, s6 offen offset:{1024*par} {ntw} lds', 'S0')
    p(f's_add_u32 m0, s{J11}, 16384\nv_add_u32 v{VW+2}, s7, v{VW}')
    w0(0)
    p(f's_add_u32 m0, s{J11}, {16384+8192}\nv_add_u32 v{VW+3}, s7, v{VW+1}')
    w0(1)
    p(f's_cmp_eq_u32 s{SIX}, 1\ns_cselect_b32 s5, 8, 4\nv_mov_b32 v7, 0x7fff0000\ns_add_u32 m0, s{J11}, {16384+2*8192}')
    for par in range(2):
        p(f'v_cmp_gt_u32 vcc, s5, v{4-par}\nv_add_u32 v6, s4, v{VW+2+par}\nv_cndmask_b32 v{VW+4+par}, v7, v6, vcc')
    w0(2)
    mark('h_w')
    p(f'v_add_u32 v{VX+2}, {2*7168}, v{VX}\nv_add_u32 v{VX+3}, {2*7168}, v{VX+1}')
    p(f's_lshl2_add_u32 s{SXB}, s{RB}, s{J}\ns_lshl_b32 s{SXB}, s{SXB}, 15\ns_lshl_b32 s{J12}, s{J}, 12')
    tabs = {'x1_o24': ['01234567', '10325476', '01234567', '10325476'], 'lead': ['01243567', '10324576', '02134657', '10235467'],
            'x3_o24': ['01234567', '10325476', '01456723', '10547632'], 'lead2': ['01425367', '10324756', '02146357', '10253467'],
            'lead3': ['01423567', '10253467', '02136457', '13024756'], 'lead4': ['01243567', '10325467', '02134657', '10234576'],
            'lead5': ['01243657', '10324576', '02134567', '10235467'],
            'z1': ['01243567', '01324576', '02134657', '01235467'], 'z2': ['01234567', '02143657', '01234567', '02143657']}[order]
    tv = [int(t[::-1], 16) for t in tabs]
    p(f's_mov_b32 s{SLC}, {hex(tv[0])}\ns_mov_b32 s7, {hex(tv[2])}\ns_bitcmp1_b32 s{XM}, 0')
    p(f's_cselect_b32 s{SLC}, {hex(tv[1])}, s{SLC}\ns_cselect_b32 s7, {hex(tv[3])}, s7\ns_bitcmp1_b32 s{XM}, 1\ns_cselect_b32 s{SLC}, s7, s{SLC}')
    p(f's_and_b32 s7, s3, 6\ns_mul_i32 s7, s7, 0x11111111\ns_add_u32 s{SLC}, s{SLC}, s7\ns_bfe_u32 s4, s{XM}, 0x10001')
    def slice_dma(t, lo=0, hi=10):
        slot = (t % 3) * SLOT
        p(f's_bfe_u32 s3, s{SLC}, {hex(0x30000 + 4*t)}\ns_lshl_b32 s5, s3, 7\ns_mul_i32 s6, s3, s{W64}')
        p(f's_add_u32 s5, s5, s{SXB}\ns_add_u32 s6, s6, s{SWB}')
        ops = []
        for i in range(4):
            ops.append((f's_add_u32 m0, s{J12}, {slot}', f'buffer_load_dwordx4 v{VX+i}, {srd(SX)}, s5 offen offset:{1024*i} {ntx} lds'))
            if i < 3:
                for par in range(2):
                    ops.append((f's_add_u32 m0, s{J11}, {slot + 16384 + i*8192}', f'buffer_load_dwordx4 v{VW+2*i+par}, {srd(SW)}, s6 offen offset:{1024*par} {ntw} lds'))
        last = None
        for m, l in ops[lo:hi]:
            if m != last: p(m); last = m
            p(l, f'S{t}')
    p(f's_mov_b32 s{SAUX+2}, 2752\ns_cmp_eq_u32 s{TYPE}, 0')
    p(f's_cselect_b32 s{SAUX}, s44, s52\ns_cselect_b32 s{SAUX+1}, s45, s53\ns_cselect_b32 s{SAUX+2}, 16384, s{SAUX+2}')
    p(f's_and_b32 s{SAUX+1}, s{SAUX+1}, 0xffff\ns_mov_b32 s{SAUX+3}, 0x20000')
    mksrd(SWS, None, 0x10000000)
    srds_late(); ids_late()
    VO = 64
    blk_setup()
    tramp(1)
    ONES, SENT, VB1 = 24, 72, 19
    aCS, aLW, aLX, aLR, aZS = 28, 31, 76, 77, 253
    CSB, RSB, PFB, PRE, PREN = 40, 41, 43, 48, 49
    p(f's_lshl_b32 s5, s{GID}, 2\ns_add_u32 s3, s5, s{J}\ns_lshl_b32 s{CSB}, s3, 12\ns_add_u32 s{CSB}, s{CSB}, {WS_CS}')
    p(f's_lshl_b32 s{RSB}, s{RB}, 11\ns_lshl_b32 s5, s{J}, 9\ns_add_u32 s{RSB}, s{RSB}, s5\ns_add_u32 s{RSB}, s{RSB}, {WS_RS}')
    p(f's_xor_b32 s3, s3, 4\ns_lshl_b32 s{PFB}, s3, 11\ns_add_u32 s{PFB}, s{PFB}, {WS_FKV}')
    p(f's_lshl_b32 s50, s{RB}, 13\ns_lshl_b32 s5, s3, 7\ns_add_u32 s50, s50, s5\ns_add_u32 s50, s50, {WS_FO}')
    p(f's_lshl_b32 s46, s3, 14\ns_add_u32 s46, s46, {WS_KVP}\ns_lshl_b32 s47, s3, 11\ns_add_u32 s47, s47, {WS_ZP}')
    p(f's_lshl_b32 s5, s{RB}, 10\ns_add_u32 s53, s46, s5\ns_lshl_b32 s5, s{RB}, 7\ns_add_u32 s54, s47, s5\ns_xor_b32 s53, s53, 65536\ns_xor_b32 s54, s54, 8192')
    flag_base()
    p('v_lshrrev_b32 v2, 4, v0\nv_bfe_u32 v3, v0, 2, 2\nv_and_b32 v4, 3, v0')
    p('v_lshl_add_u32 v5, v2, 3, v3\nv_lshlrev_b32 v5, 7, v5\nv_lshl_add_u32 v5, v4, 3, v5')
    p('v_bfe_u32 v6, v0, 3, 2')
    p(f'v_xor_b32 v6, s{J}, v6\nv_lshl_add_u32 v5, v6, 5, v5')
    p(f's_lshl_b32 s5, s4, 12\ns_add_u32 s5, s5, 16384\nv_add_u32 v{aCS}, s5, v5')
    p(f'v_mov_b32 v{VB1}, 0')
    p(f'buffer_load_dword v18, v{VB1}, {srd(SWS)}, 0 offen sc1', 'gen')
    aP0, aP1, aVr, aQr, aZL, aOS, aWP, aRH, aS1 = 238, 239, 250, 252, 254, 233, 234, 237, 78
    def chore(t, typ):
        if t == 2:
            p('v_and_b32 v29, 31, v0\nv_lshrrev_b32 v30, 5, v0\nv_lshlrev_b32 v29, 4, v29\nv_lshrrev_b32 v2, 4, v0')
            p(f'v_and_b32 v3, 15, v0\nv_lshlrev_b32 v4, 4, v3\nv_lshl_add_u32 v{aS1}, v2, 10, v4')
            p(f's_lshl_b32 s5, s{J}, 8\ns_add_u32 s6, s5, {L_WS}\nv_add_u32 v{aLW}, s6, v{aS1}')
            p(f's_add_u32 s6, s5, {L_RS2}\nv_lshrrev_b32 v5, 1, v29\nv_add_u32 v{aLR}, s6, v5')
            p(f's_lshl_b32 s5, s{J}, 9\ns_add_u32 s5, s5, {L_XS}\nv_add_u32 v{aLX}, s5, v29')
            if typ == 1: p(f'v_lshlrev_b32 v3, 1, v3\nv_lshl_add_u32 v79, v2, 7, v3')
            else:
                if not zc: p(f'v_lshlrev_b32 v5, 5, v2\nv_lshl_add_u32 v{aZL}, v3, 7, v5')
                p(f'v_lshl_add_u32 v4, v30, 8, v4\nv_and_b32 v5, 1, v2\nv_lshl_add_u32 v{aOS}, v5, 10, v4')
                p(f'v_and_b32 v4, 1, v0\nv_lshl_add_u32 v4, v2, 1, v4\nv_lshlrev_b32 v{aZS}, 4, v4')
                if zc: p(f'v_lshrrev_b32 v5, 1, v3\nv_lshl_add_u32 v{aZL}, v5, 7, v{aZS}')
                p(f'v_mov_b64 {vr(SENT,2)}, -1\nv_mov_b64 {vr(SENT+2,2)}, -1\nv_lshlrev_b32 v236, 2, v0')
        if t == 3:
            b2_addr(VF, VO if wr_ else None, 2)
            if typ == 0:
                wphi_addr(aWP, 3, False)
                p(f'v_lshlrev_b32 v3, 3, v0\nv_add_u32 v{aRH}, {L_RS2}, v3')
        if t == 4: final_addr(2)
        if t == 5 and typ == 0:
            p('v_lshrrev_b32 v2, 4, v0\nv_and_b32 v4, 3, v0\nv_lshrrev_b32 v5, 2, v0')
            p('v_and_b32 v7, 1, v0\nv_lshlrev_b32 v3, 4, v7\nv_mov_b32 v6, 0x3f80\nv_lshlrev_b32 v6, v3, v6\nv_bfe_u32 v3, v0, 1, 3')
            for i in range(4): p(f'v_cmp_eq_u32 s[6:7], {i}, v3\nv_cndmask_b32 v{228+i}, 0, v6, s[6:7]')
            p('v_bfe_u32 v6, v5, 1, 2\nv_lshrrev_b32 v3, 1, v4\nv_xor_b32 v6, v6, v3\nv_lshlrev_b32 v6, 4, v6')
            p('v_lshl_add_u32 v6, v7, 3, v6\nv_lshl_add_u32 v6, v5, 6, v6')
            p(f's_add_u32 s5, s{J12}, {2*LAYER}\nv_add_u32 v{aP0}, s5, v6\nv_xor_b32 v{aP1}, 32, v{aP0}')
            p('v_xor_b32 v6, v4, v2\nv_lshlrev_b32 v6, 3, v6\nv_lshl_add_u32 v6, v5, 5, v6')
            p(f's_add_u32 s5, s{J12}, {4*LAYER}\nv_add_u32 v{aVr}, s5, v6')
            p(f'v_bfe_u32 v6, v0, 3, 1\nv_xor_b32 v6, v6, v30\nv_lshlrev_b32 v6, 4, v6\nv_lshl_add_u32 v6, v29, 1, v6\ns_add_u32 s5, s{J12}, {MISC if qm else LAYER}\nv_add_u32 v{aQr}, s5, v6')
    mark('h_set')
    slice_dma(1, 0, part)
    mark('h_s1')
    p(f's_cmp_eq_u32 s{TYPE}, 0\ns_cbranch_scc1 L_H0')
    vm0 = list(p.vm)
    def sent(soff, imm): p(f'buffer_store_dwordx4 {vr(SENT,4)}, v{LN16}, {srd(SWS)}, s{soff} offen offset:{imm} sc1', 'pre')
    def rawwo(lim=None):
        for i in range(11, 15):
            blk_idx(i)
            p(f's_lshl_b32 s6, s6, 15\ns_add_u32 s6, s6, s{CB7}')
            for rg in range(4):
                if lim and len(p.vm) >= lim: p(f's_waitcnt vmcnt({lim-1})')
                p(f'buffer_load_dwordx4 {vr(132+16*(i-11)+4*rg,4)}, v{VO+rg}, {srd(SWO)}, s6 offen offset:{1024*rg}', 'raw')
    def gather():
        for i in range(4):
            p(f'buffer_load_dwordx4 {vr(32+4*i,4)}, v{LN16}, {srd(SWS)}, s{CSB} offen offset:{1024*i} sc1', 'gath')
        p(f'buffer_load_dwordx4 {vr(48,4)}, v29, {srd(SWS)}, s{RSB} offen sc1', 'gath')
    for typ in (1, 0):
        p.vm = list(vm0)
        p(f'L_H{typ}:')
        for ci, ct_ in enumerate(chf if (chf and typ == 1) else chs):
            if ct_ == '0': chore(2 + ci, typ)
        p.wait(vm='S0')
        mark('h_s0')
        p('s_barrier')
        stamp(2)
        for u in range(3):
            for hf in range(2):
                p(f'ds_read_b64_tr_b16 {vr(32+4*u+2*hf,2)}, v{aCS} offset:{u*8192+hf*512}')
        if part < 10: slice_dma(1, part)
        slice_dma(2, 0, part)
        def aux():
            if typ == 0:
                p(f's_lshl_b32 s5, s{J}, 10\ns_add_u32 m0, s5, {L_WPHI}\ns_lshr_b32 s6, s{GRP}, 1\ns_lshl_b32 s6, s6, 12\ns_add_u32 s5, s5, s6')
                p(f'buffer_load_dwordx4 v{LN16}, {srd(SAUX)}, s5 offen lds', 'aux')
            else:
                p(f's_lshl_b32 s5, s{J}, 5\ns_add_u32 s5, s5, s{COLB}')
                p(f'buffer_load_ushort v{VB1}, v79, {srd(SAUX)}, s5 offen', 'aux')
        p('s_waitcnt lgkmcnt(0)')
        p.wait(vm='S1')
        p('s_barrier')
        if part < 10: slice_dma(2, part)
        p(f's_setprio {hp}')
        for i in range(4): p(f'v_mov_b32 v{ONES+i}, 0x3f803f80')
        p(f'v_lshlrev_b32 v{LN16}, 4, v0')
        for u in range(3): mfma16(48 + 4*u, ONES, 32 + 4*u, '0')
        p(f'v_readfirstlane_b32 s{NONCE}, v18')
        p(f's_mul_i32 s{NONCE}, s{NONCE}, 0x9E3779B1\ns_add_u32 s{NONCE}, s{NONCE}, 0x7F4A7C15')
        p(f's_lshl_b32 s5, s{RB}, 8\ns_add_u32 s7, s5, s{CSB}')
        p(f'v_mov_b32 v{VNON}, s{NONCE}\nv_mov_b32 v63, 0')
        p(f'v_mov_b32 v49, v52\nv_mov_b32 v50, v56\nv_mov_b32 v51, s{NONCE}')
        def stats():
            p.wait(vm='gath')
            p('s_waitcnt lgkmcnt(0)\ns_mov_b32 s3, 0')
            p(f'L_Hchk{typ}:')
            p(f'v_cmp_ne_u32 vcc, s{NONCE}, v35\nv_cmp_ne_u32 s[0:1], s{NONCE}, v39\nv_cmp_ne_u32 s[4:5], s{NONCE}, v43\nv_cmp_ne_u32 s[6:7], s{NONCE}, v47')
            p(f's_or_b64 s[0:1], s[0:1], vcc\nv_cmp_ne_u32 vcc, s{NONCE}, v51\ns_or_b64 s[4:5], s[4:5], s[6:7]\ns_or_b64 s[0:1], s[0:1], s[4:5]\ns_or_b64 s[0:1], s[0:1], vcc')
            p(f's_cbranch_scc0 L_Hok{typ}')
            p(f's_add_u32 s3, s3, 1\ns_cmp_gt_u32 s3, {SPIN}\ns_cbranch_scc1 L_Hok{typ}')
            save = list(p.vm)
            gather()
            p(f's_waitcnt vmcnt(0)\ns_branch L_Hchk{typ}')
            p.vm = save
            p(f'L_Hok{typ}:')
            for c in range(3):
                p(f'v_add_f32 v{32+c}, v{32+c}, v{36+c}\nv_add_f32 v{40+c}, v{40+c}, v{44+c}')
            p('v_mov_b32 v35, 0')
            for c in (0, 2, 1): p(f'v_add_f32 v{32+c}, v{32+c}, v{40+c}')
            p('v_lshlrev_b32 v52, 16, v49\nv_and_b32 v53, 0xffff0000, v49')
            p('v_permlane32_swap_b32 v32, v34\nv_permlane32_swap_b32 v33, v35')
            p('v_add_f32 v32, v32, v34\nv_add_f32 v33, v33, v35')
            p(f'v_add_f32 v52, v52, v53\nds_write2_b32 v{aLR}, v52, v50 offset0:{1-typ} offset1:{typ}')
            p('v_mov_b32 v50, v48\nv_mov_b32 v51, 0')
            p('v_permlane16_swap_b32 v32, v33\nv_add_f32 v32, v32, v33')
            p(f'ds_write_b128 v{aLX}, v[48:51]')
            p('v_cvt_pk_bf16_f32 v60, v32, v32\nv_lshlrev_b32 v34, 16, v60\nv_sub_f32 v34, v32, v34\nv_cvt_pk_bf16_f32 v62, v34, v34')
            if typ == 1: p('s_mov_b32 exec_lo, 0\ns_mov_b32 exec_hi, 0xffff0000\nv_mov_b32 v61, 0\ns_mov_b64 exec, -1')
            p(f'ds_write_b128 v{aLW}, v[60:63]')
        def opre(t):
            if typ != 0: return
            if t == 3:
                p(f's_lshl2_add_u32 s3, s{GRP}, s{J}\ns_xor_b32 s3, s3, 4')
                p(f's_mul_i32 s72, s{RB}, {2*A2_RH}\ns_lshr_b32 s5, s3, 1\ns_lshl_b32 s5, s5, 12\ns_add_u32 s72, s72, s5\ns_and_b32 s5, s3, 1\ns_lshl_b32 s5, s5, 9\ns_add_u32 s72, s72, s5')
                p(f's_add_u32 s72, s72, {WS_A2 + 44*4096}\ns_add_u32 s73, s72, {A2_RH}')
            for pr in range(4):
                if so and pft[pr] == str(t): p(f'buffer_store_dwordx4 {vr(SENT,4)}, v{aOS}, {srd(SWS)}, s{72+(pr>>1)} offen offset:{2048*(pr&1)} sc1', 'pre')
        def pubcs():
            p('s_mov_b64 exec, 0xffff')
            p(f'buffer_store_dwordx4 v[48:51], v{LN16}, {srd(SWS)}, s7 offen sc1', 'cs')
            p('s_mov_b64 exec, -1')
        touch = []
        def tbase(idx, per, lim, ptr, extra):
            return f's_mul_i32 s6, s{idx}, {per}\ns_min_u32 s6, s6, {lim}\ns_add_u32 s6, s6, {extra}\ns_add_u32 s6, s{ptr}, s6\ns_addc_u32 s7, s{ptr+1}, 0'
        for (idx, step, extra) in ((52, 128, 60), (55, 1024, 384 + 60)):
            for (n, ptr, size) in ((11, SW2, 1376 * 1024), (4, SWO, 512 * 1024)):
                for i in range(n): touch.append((tbase(idx, n * step, size - n * step, ptr, extra), i * step))
        p(f's_lshl2_add_u32 s52, s2, s{J}\ns_lshr_b32 s5, s2, 3\ns_lshl2_add_u32 s55, s5, s{J}')
        def vtouch(idx, step, extra):
            p(f's_mul_i32 s5, s{idx}, {11*step}\ns_add_u32 s5, s5, {extra}\nv_mul_u32_u24 v2, {step}, v0\nv_add_u32 v3, s5, v2\ns_mov_b64 exec, 0x7ff')
            p(f'buffer_load_dword v4, v3, {srd(SW2)}, 0 offen', 'pf')
            p(f's_mul_i32 s5, s{idx}, {4*step}\ns_add_u32 s5, s5, {extra}\ns_mov_b64 exec, 0xf')
            p(f'buffer_load_dword v5, v2, {srd(SWO)}, s5 offen', 'pf')
            p('s_mov_b64 exec, -1')
        def touches(k):
            if 'nopf' in dbg: return
            if vt1:
                if k + 1 == vt1: vtouch(52, 128, 0)
                if k + 1 == vt2: vtouch(55, 1024, 384)
                return
            last = None
            k -= sp0
            if k < 0: return
            for (b, o) in touch[:nt_][spb * k:spb * k + spb]:
                if b != last: p(b); last = b
                p(f's_load_dwordx2 vcc, s[6:7], {o}')
        for t in range(1, 6):
            if t == 1: pubcs()
            if 2 < t + 1 <= partn: slice_dma(t + 1, part2)
            slice_dma(t + 2, 0, part2 if t + 2 <= partn else 10)
            if t == 5 and gt == 5: gather()
            for ci, ct_ in enumerate(chf if (chf and typ == 1) else chs):
                if int(ct_) == t:
                    if hp2 != hp: p(f's_setprio {hp2}')
                    chore(2 + ci, typ)
                    if hp2 != hp: p(f's_setprio {hp}')
            if t == 2: aux()
            opre(t)
            if typ == 0 and str(t) in l2t:
                if t == int(min(c for c in l2t if c.isdigit())):
                    p(f's_lshr_b32 s3, s{GL}, 1\ns_lshl2_add_u32 s3, s{RL}, s3\ns_sub_u32 s5, s{ST1}, s{ST0}')
                    p(f'v_mul_u32_u24 v2, s5, v30\nv_bfe_u32 v3, v0, 4, 1\nv_add_u32 v2, v2, v3\nv_and_b32 v3, 15, v0\nv_lshlrev_b32 v3, 7, v3')
                    p(f's_lshl_b32 s5, s{ST0}, 4\ns_add_u32 s5, s5, s3\ns_lshl_b32 s5, s5, 11\nv_lshl_add_u32 v2, v2, 15, v3\nv_add_u32 v70, s5, v2')
                for k, ch in enumerate(l2t):
                    if ch == str(t):
                        p(f's_mov_b32 s5, {65536*(k>>1)}\ns_mov_b32 exec_{"lo" if k & 1 else "hi"}, 0')
                        p(f'buffer_load_dword v71, v70, {srd(SW2)}, s5 offen', 'tch')
                        p('s_mov_b64 exec, -1')
            touches(t - 1)
            if t == 5: p(f'v_lshl_or_b32 v61, v{VB1}, 16, v{VB1}')
            p.wait(vm=f'S{t+1}')
            p('s_barrier')
        assert 'aux' not in p.vm
        if partn >= 7: slice_dma(7, part2)
        touches(5)
        if gt == 6: gather()
        bt = (bta, btf)[typ]; nb = len(bt)
        def kvpre():
            p(f'v_mov_b32 v18, v{aS1}\ns_sub_u32 s48, s47, {WS_ZP}\ns_lshr_b32 s48, s48, 1\ns_add_u32 s48, s48, {WS_K2}')
            p(f's_and_b32 s5, s{RB}, 3\ns_lshl_b32 s5, s5, 8\ns_add_u32 s52, s48, s5\ns_add_u32 s46, s46, s5')
            p(f's_lshr_b32 s5, s{RB}, 2\ns_cmp_eq_u32 s5, s{J}\ns_cbranch_scc0 L_nopre2\ns_mov_b64 exec, 0xffff')
            p('s_xor_b32 s5, s52, 4096'); sent(5, 0); p.vm.pop()
            p('s_mov_b64 exec, -1\nL_nopre2:')
            sent(53, 0)
            p('s_mov_b64 exec, 0xff'); sent(54, 0); p('s_mov_b64 exec, -1')
        def slot(c):
            if typ == 0 and kvt == c: kvpre()
            opre(c)
            for i in range(nb):
                if bt[i] == c:
                    assert i < 4 or c != '6'
                    b2_dma(i, VF, None, 'b2')
        slot('6')
        p.wait(vm='S7')
        p('s_barrier')
        slot('a')
        stats()
        slot('7')
        p('s_waitcnt lgkmcnt(0)')
        p('s_barrier')
        p('s_setprio 0')
        stamp(3)
        slot('8')
        if typ == 1:
            final_loads()
            assert e0 >= nb
            for i in range(nb, e0): b2_dma(i, VF, None, 'b2', thr)
            if wr_ and wf == 0: rawwo(thr)
            if bg >= 0:
                for i in range(e0, e1): b2_dma(i, VF, None, 'b2', thr2)
                p('s_barrier')
                p('s_setprio 3')
            for i in range(e0, e1 if bg < 0 else e0):
                p('s_setprio 3')
                prepoll(0)
                p('s_setprio 0')
                b2_dma(i, VF, None, 'b2', thr2)
                p.wait(vm='P0')
                p(f'v_cmp_ne_u32 vcc, s{NONCE}, v{POLT}\ns_and_b64 vcc, vcc, 15\ns_cbranch_scc0 L_rdy{i}')
            poll_round(0)
            for i in range(e1 - 1, e0 - 1, -1):
                p(f'L_rdy{i}:')
                stamp(4)
                p('s_barrier')
                p('s_setprio 3')
                if i > e0: p(f's_branch L_fill{i+1}')
            for i in range(e0 + 1, e1 if cf else 9):
                p(f'L_fill{i}:')
                b2_dma(i, VF, None, 'b2')
            p(f'L_fill{e1 if cf else 9}:')
            poll_round(1)
            stamp(5)
            p('s_barrier')
            if wr_ and wf == 1: p('s_setprio 0'); rawwo(); p('s_setprio 3')
            if not p3: poll_round(3)
            poll_round(2)
            stamp(6)
            p('s_barrier')
            if wr_ and wf == 2: rawwo(); p('s_waitcnt vmcnt(0)')
            if p3 == 1:
                p('s_barrier')
                poll_round(3)
                stamp(7)
                p('s_barrier')
            p('s_branch L_Hfin')
        else:
            done = []
            def preflags():
                done.append(1)
                p(f's_lshl_b32 s5, s{RB}, 7\ns_add_u32 s55, s5, s{PFB}\ns_xor_b32 s55, s55, 8192')
                p.wait(vm='pre')
                if not gk: lineflag(55, 236, VNON)
                if not go:
                    for sg in range(2):
                        lineflag(50, 236, VNON)
                        p('s_add_u32 s50, s50, 4096')
            for i in range(nb, 6 if qm else 5):
                if i - nb == flp: preflags()
                b2_dma(i, VF, None, 'b2', athr)
    final_loads()
    A0, A1, QB, CC = 116, 120, 100, 124
    if l2 >= 2:
        assert not qm
        p(f'v_mov_b32 v10, {L_NONCE}\nv_mov_b32 v11, 0\nds_write_b32 v10, v11')
    wphi_frags(aWP, A0, A1, 3)
    p(f'ds_read_b32 v{CC}, v{aRH}\nds_read_b32 v{CC+2}, v{aRH} offset:512', 'wphi')
    wphi_mask(A0, A1, 3)
    p(f'v_mul_f32 v{CC}, {f32(LOG2E)}, v{CC}\nv_mul_f32 v{CC+2}, {f32(LOG2E)}, v{CC+2}')
    p('v_and_b32 v2, 1, v0\nv_cmp_eq_u32 vcc, 1, v2')
    if not done: preflags()
    if wr_: rawwo()
    if not wl: p.wait(vm='fin')
    p('s_barrier')
    if gk == 2: lineflag(55, 236, VNON)
    if hpa: p(f's_setprio {hpa}')
    if not pp4: prepoll(4)
    stamp(4); mark('ba')
    def qreads():
        for i in range(4): p(f'ds_read_b128 {vr(QB+4*i,4)}, v{aQr} offset:{1024*i}', 'q')
    for kb in range(5):
        if kb < 4:
            b = 32 + 12 * kb
            for hf in range(2):
                o = (kb >> 1) * LAYER + (kb & 1) * 2048 + hf * 1024
                p(f'ds_read_b64_tr_b16 {vr(b+2*hf,2)}, v{aP0} offset:{o}', f'kv{kb}')
                p(f'ds_read_b64_tr_b16 {vr(b+4+2*hf,2)}, v{aP1} offset:{o}', f'kv{kb}')
                p(f'ds_read_b64_tr_b16 {vr(b+8+2*hf,2)}, v{aVr} offset:{kb*1024+hf*512}', f'kv{kb}')
        elif not dq: qreads()
        if kb >= 1:
            k0 = kb - 1; b0 = 32 + 12 * k0
            p.wait(lg=f'kv{k0}')
            c = '0' if k0 == 0 else None
            mfma16(80, b0, b0 + 8, c); mfma16(84, b0 + 4, b0 + 8, c)
    if bce == 1:
        assert dq
        p('s_barrier'); qreads()
    for k0 in range(4):
        b0 = 32 + 12 * k0; c = '0' if k0 == 0 else None
        mfma16(88, b0, ONES, c); mfma16(92, b0 + 4, ONES, c)
        if k0 == 0:
            for i in range(4): p(f'v_cvt_pk_bf16_f32 v{96+i}, v{80+2*i}, v{81+2*i}')
            p(f'buffer_store_dwordx4 v[96:99], v{LN16}, {srd(SWS)}, s53 offen sc1')
            if bce == 2:
                p('s_barrier'); qreads()
    for i in range(4): p(f'v_cndmask_b32 v{88+i}, v{88+i}, v{92+i}, vcc')
    p('s_mov_b32 exec_lo, 0x00030003\ns_mov_b32 exec_hi, 0x00030003')
    p(f'buffer_store_dwordx4 v[88:91], v{aZS}, {srd(SWS)}, s54 offen sc1')
    p('s_mov_b64 exec, -1')
    if sk and gk == 1: lineflag(55, 236, VNON)
    p('s_waitcnt lgkmcnt(0)')
    assert not (wl and bce)
    p.wait(vm='fin')
    mark('pub')
    if not bce: p('s_barrier')
    mark('bc')
    if dq:
        if not bce: qreads()
        p('s_waitcnt lgkmcnt(0)')
        if not qm or nl_ == 10: p('s_barrier')
        mark('be')
    if not sk:
        p('s_waitcnt vmcnt(0)')
        lineflag(55, 236, VNON)
    DD = [32, 48]; EP = 64; SS = 80; QO = 196
    for sg in range(2):
        mfma32(DD[sg], A0, QB + 8 * sg, '0'); mfma32(DD[sg], A1, QB + 8 * sg + 4)
    qreg = lambda sg: (lambda sign, i: QO + 16 * sg + 4 * (i >> 1) + 2 * sign + (i & 1))
    def qsoft(sg, mid=None):
        nopk[0] = bool(plain) and not (pk0 and sg == 0)
        softmax(DD[sg], EP, SS, CC + 2 * sg, CC + 4, qreg(sg), mid)
        nopk[0] = bool(plain)
        R = QO + 16 * sg
        for i in range(4):
            for b in (0, 1): p(f'v_permlane32_swap_b32 v{R+4*b+i}, v{R+4*b+8+i}')
        for i in range(4):
            for b in (0, 2): p(f'v_permlane16_swap_b32 v{R+4*b+i}, v{R+4*b+4+i}')
    def sentwait(load, regs, tag):
        lp = p.label('L_sw'); ld = p.label('L_swd')
        p('s_mov_b32 s3, 0')
        p.wait(vm=tag)
        p(f'{lp}:')
        if len(regs) == 1: p(f'v_cmp_eq_u32 vcc, -1, v{regs[0]}')
        elif len(regs) == 2: p(f'v_max_u32 v2, v{regs[0]}, v{regs[1]}\nv_cmp_eq_u32 vcc, -1, v2')
        else: p(f'v_max3_u32 v2, v{regs[0]}, v{regs[1]}, v{regs[2]}\nv_max_u32 v2, v2, v{regs[3]}\nv_cmp_eq_u32 vcc, -1, v2')
        p(f's_cbranch_vccz {ld}')
        p(f's_add_u32 s3, s3, 1\ns_cmp_gt_u32 s3, {SPIN}\ns_cbranch_scc1 {ld}')
        sv = list(p.vm)
        if ksl: p(f's_sleep {ksl}')
        load()
        p(f's_waitcnt vmcnt(0)\ns_branch {lp}')
        p.vm = sv
        p(f'{ld}:')
    def load1():
        for i in range(4):
            p(f's_add_u32 s5, s46, {4096*i}')
            p(f'buffer_load_dwordx4 {vr(100+4*i,4)}, v18, {srd(SWS)}, s5 offen sc1', 'l1')
    def loadz():
        for i in range(2): p(f'buffer_load_dwordx4 {vr(88+4*i,4)}, v{aZL}, {srd(SWS)}, s47 offen offset:{(1024 if zc else 16)*i} sc1', 'lz')
    def load2(): p(f'buffer_load_dwordx4 v[96:99], v{LN16}, {srd(SWS)}, s48 offen sc1', 'l2')
    def isred(): p(f's_lshr_b32 s5, s{RB}, 2\ns_cmp_eq_u32 s5, s{J}')
    assert e1p
    def early():
        chkpoll(4)
        isred(); p('s_cbranch_scc0 L_nol1')
        load1()
        p('L_nol1:')
    nop_ = lambda: None
    at = lambda f, k: {1: [f, nop_, nop_, nop_], 2: [f, nop_], 3: [f]}[k]
    if e1p < 4: qsoft(0, at(early, e1p))
    else:
        if pp4 == 4: prepoll(4)
        qsoft(0, at(lambda: prepoll(4), pp4) if 0 < pp4 < 4 else None); early()
    mark('sm0')
    def reduce1():
        sv = [t for t in p.vm if t != 'l1']
        isred(); p('s_cbranch_scc0 L_nored')
        sentwait(load1, (103, 107, 111, 115), 'l1')
        for i in range(4): mfma16(116, 228, 100 + 4 * i, '0' if i == 0 else None)
        p('v_cvt_pk_bf16_f32 v120, v116, v117\nv_cvt_pk_bf16_f32 v121, v118, v119\nv_mov_b32 v122, v120\nv_mov_b32 v123, v121')
        p('v_permlane16_swap_b32 v120, v122\nv_permlane16_swap_b32 v121, v123\ns_mov_b64 exec, 0xffff')
        p(f'buffer_store_dwordx4 v[120:123], v{LN16}, {srd(SWS)}, s52 offen sc1')
        p('s_mov_b64 exec, -1')
        if l2 == 3: p('ds_write_b32 v10, v10')
        p.vm = sv
        p('L_nored:')
        mark('gl')
        loadz()
    if r1p == 0:
        reduce1(); qsoft(1)
    else: qsoft(1, at(reduce1, r1p))
    if go == 3:
        for sg in range(2):
            lineflag(50, 236, VNON)
            p('s_add_u32 s50, s50, 4096')
    stamp(6); mark('sm1')
    if l2 == 0: load2()
    sentwait(loadz, (91, 95), 'lz')
    def tellred():
        isred(); p('s_cbranch_scc0 L_notell\nds_write_b32 v10, v10\nL_notell:')
    if l2 == 2: tellred()
    if zc:
        add2(88, 88, 92); add2(90, 90, 94)
        for d in ('quad_perm:[2,3,0,1]', 'row_ror:4', 'row_ror:8'):
            for i in range(4): p(f'v_add_f32_dpp v{88+i}, v{88+i}, v{88+i} {d} row_mask:0xf bank_mask:0xf')
        p('v_cvt_pk_bf16_f32 v92, v88, v89\nv_cvt_pk_bf16_f32 v93, v90, v91')
        for i in range(4): p(f'v_mov_b32_dpp v{116+i}, v{92+(i&1)} quad_perm:{"[1,1,3,3]" if i >> 1 else "[0,0,2,2]"} row_mask:0xf bank_mask:0xf')
    else:
        for d in ('quad_perm:[1,0,3,2]', 'quad_perm:[2,3,0,1]', 'row_half_mirror', 'row_mirror'):
            for i in range(8): p(f'v_add_f32_dpp v{88+i}, v{88+i}, v{88+i} {d} row_mask:0xf bank_mask:0xf')
        for i in range(4): p(f'v_cvt_pk_bf16_f32 v{116+i}, v{88+2*i}, v{89+2*i}')
    for t8 in range(8): mfma16(32 + 4 * t8, 116, QO + 4 * t8, '0')
    for t8 in range(8): p(f'v_add_f32 v{32+4*t8}, {f32(1e-6)}, v{32+4*t8}')
    for t8 in range(8): p(f'v_rcp_f32 v{32+4*t8}, v{32+4*t8}')
    if l2 >= 2:
        p(f's_mov_b32 s3, 0\nL_lw:\nds_read_b32 v11, v10\ns_add_u32 s3, s3, 1\ns_cmp_gt_u32 s3, {SPIN}\ns_cbranch_scc1 L_lwd')
        p('s_waitcnt lgkmcnt(0)\nv_cmp_eq_u32 vcc, 0, v11\ns_cbranch_vccz L_lwd\ns_sleep 1\ns_branch L_lw\nL_lwd:')
    if l2 >= 1: load2()
    if go == 4:
        for sg in range(2):
            lineflag(50, 236, VNON)
            p('s_add_u32 s50, s50, 4096')
    mark('z')
    sentwait(load2, (99,), 'l2')
    if go == 2:
        for sg in range(2):
            lineflag(50, 236, VNON)
            p('s_add_u32 s50, s50, 4096')
    stamp(7); mark('kv')
    for t8 in range(8): mfma16(64 + 4 * t8, 96, QO + 4 * t8, '0')
    for pr in range(4):
        O = 100 + 4 * pr
        for a in range(2):
            t8 = 2 * pr + a; n_ = 64 + 4 * t8
            mul2s(n_, n_, 32 + 4 * t8); mul2s(n_ + 2, n_ + 2, 32 + 4 * t8)
            p(f'v_cvt_pk_bf16_f32 v{O+2*a}, v{n_}, v{n_+1}\nv_cvt_pk_bf16_f32 v{O+2*a+1}, v{n_+2}, v{n_+3}')
        p(f'v_permlane16_swap_b32 v{O}, v{O+2}\nv_permlane16_swap_b32 v{O+1}, v{O+3}')
        p(f'buffer_store_dwordx4 {vr(O,4)}, v{aOS}, {srd(SWS)}, s{72+(pr>>1)} offen offset:{2048*(pr&1)} sc1', f'o{pr>>1}')
        if so and go == 1 and pr & 1:
            lineflag(50, 236, VNON)
            p('s_add_u32 s50, s50, 4096')
    if not so:
        for sg in range(2):
            p.wait(vm=f'o{sg}')
            lineflag(50, 236, VNON)
            p('s_add_u32 s50, s50, 4096')
    stamp(8); mark('o')
    assert 'raw' not in p.vm
    p('L_Hfin:')
    p.vm = []; p.lg = []
    if p3 == 2:
        poll_round(3)
        p('s_barrier')
    if wr_:
        p(f'v_add_u32 v2, s{J12}, v{LN16}\nv_add_u32 v3, {6*LAYER}, v2')
        p('s_barrier')
        for i in range(11, 15):
            lay = LAYERS[i % nl_]
            for rg in range(4):
                p(f'ds_write_b128 v{3 if lay >= 6 else 2}, {vr(132+16*(i-11)+4*rg,4)} offset:{(lay % 6)*LAYER+1024*rg}')
        p('s_waitcnt lgkmcnt(0)')
        p('s_barrier')
    final_part(4)
    p('s_barrier')
    stamp(9)
    final_sum()
    p('s_barrier')
    p(f's_or_b32 s5, s2, s{WV}\ns_cmp_eq_u32 s5, 0\ns_cbranch_scc0 L_done')
    p('s_mov_b32 s5, 0')
    setflag(5, LN16, VNON)
    p('s_branch L_done')

    p.vm = []; p.lg = []
    p('L_C:')
    nopk[0] = False
    WM, WN = 40, 41
    BB, AA, AC = 16, 64, 96
    def acc(u, e, tt): return AC + ((2 * u + e) * 4 + tt) * 4
    bA, bB, cA, cB = 2, 4, 6, 8
    aXS, aWS, aRS, aRHO = 10, 11, 12, 13
    CF, CO, RW, TB0, aWPHI, aPHI, aV, aQ = 224, 228, 233, 236, 250, 252, 253, 254
    p(f's_load_dwordx2 s[{SB2}:{SB2+1}], s[0:1], 64\ns_load_dwordx2 s[{SOUT}:{SOUT+1}], s[0:1], 72\ns_and_b32 s{J}, s{WV}, 3')
    mark('c_in')
    p(f's_setprio {sp}')
    p(f's_and_b32 s7, s2, 6\ns_lshr_b32 s{RL}, s2, 6\ns_lshl1_add_u32 s{RB}, s7, s{RL}\ns_bfe_u32 s{GL}, s2, 0x30003')
    p(f's_and_b32 s{XC}, s2, 1\ns_lshl3_add_u32 s{G16}, s{XC}, s{GL}')
    STR = 3
    p('v_and_b32 v17, 31, v0\nv_lshrrev_b32 v30, 5, v0\nv_lshlrev_b32 v17, 4, v17\nv_lshl_add_u32 v17, v30, 10, v17\nv_mov_b32 v18, 0')
    p(f's_lshl_b32 s{STR}, s{RB}, 7\ns_lshl_b32 s5, s{G16}, 3\ns_add_u32 s{STR}, s{STR}, s5\ns_lshl_b32 s5, s{J}, 1\ns_add_u32 s{STR}, s{STR}, s5\ns_lshl_b32 s5, s{STR}, 10')
    p(f's_mov_b32 s{SX+2}, {2048*1024}\ns_mov_b32 s{SX+3}, 0x20000')
    if g3: p(f's_lshr_b32 s6, s2, 3\ns_lshl2_add_u32 s6, s6, s{J}\ns_mul_i32 s6, s6, {g3r}\ns_lshl_b32 s7, s7, 6\ns_add_u32 s6, s6, s7\ns_and_b32 s6, s6, 511\ns_mul_i32 s6, s6, 3072\nv_lshl_add_u32 v19, v0, 10, s6')
    p('s_waitcnt lgkmcnt(0)')
    p(f's_mov_b32 s{SX}, s40\ns_and_b32 s{SX+1}, s41, 0xffff')
    def g3touch():
        p(f's_cmp_eq_u32 s{XC}, 0\ns_cbranch_scc0 L_nog3\ns_mov_b64 exec, {hex((1 << 3*g3r) - 1)}')
        p('global_load_dword v217, v19, s[42:43] offset:384')
        p.vm.pop()
        p('s_mov_b64 exec, -1\nL_nog3:')
    if g3 == 1: g3touch()
    if 'xs' in dbg: p('s_mov_b64 exec, 1')
    p(f'buffer_load_dwordx4 v[64:67], v17, {srd(SX)}, s5 offen', 'st')
    p(f'buffer_load_dwordx4 v[68:71], v17, {srd(SX)}, s5 offen offset:512', 'st')
    mksrd(SWS, None, 0x10000000)
    if 'xs' in dbg: p('s_mov_b64 exec, -1')
    if g3 == 2: g3touch()
    p(f'buffer_load_dword v31, v18, {srd(SWS)}, 0 offen sc1', 'st')
    mark('c_ld')
    p('s_setprio 0')
    p(f's_lshl_b32 s43, s{STR}, 4\ns_add_u32 s43, s43, {WS_RS}')
    p(f's_lshr_b32 s{WM}, s{J}, 1\ns_and_b32 s{WN}, s{J}, 1\ns_lshl_b32 s{J12}, s{J}, 12')
    p('v_and_b32 v14, 15, v0\nv_lshrrev_b32 v15, 4, v0')
    p(f'v_lshrrev_b32 v{bA}, 1, v14\nv_xor_b32 v{bA}, v{bA}, v15\nv_lshlrev_b32 v{bA}, 4, v{bA}\nv_lshl_add_u32 v{bA}, v14, 7, v{bA}')
    p(f's_lshl_b32 s5, s{WM}, 13\nv_add_u32 v{bA}, s5, v{bA}\nv_xor_b32 v{bA+1}, 64, v{bA}')
    p(f'v_bfe_u32 v24, v0, 2, 2\nv_and_b32 v25, 3, v0')
    p(f'v_lshl_add_u32 v26, v15, 3, v24\nv_lshlrev_b32 v26, 7, v26\nv_lshl_add_u32 v26, v25, 3, v26')
    p('v_bfe_u32 v27, v0, 3, 2')
    p(f'v_lshl_add_u32 v26, v27, 5, v26')
    p(f's_lshl_b32 s5, s{WN}, 6\nv_xor_b32 v{bB}, s5, v26\nv_add_u32 v{bB}, 16384, v{bB}\nv_xor_b32 v{bB+1}, 32, v{bB}')
    for i in range(4): p(f'v_mov_b32 v{cA+i}, v{bA+i}')
    p(f'v_add_u32 v{TB0}, s{J12}, v26')
    A2B, PST, PFL = 46, 47, 50
    def setup_late():
        ids_mid(); ids_late(); srds_late()
        for ct in range(1, 4): p(f'v_xor_b32 v{TB0+ct}, {32*ct}, v{TB0}')
        p(f'v_lshlrev_b32 v192, 4, v14\ns_lshl_b32 s5, s{WN}, 9\ns_add_u32 s5, s5, {L_WS}\nv_add_u32 v{aWS}, s5, v192')
        p(f's_lshl_b32 s5, s{WM}, 10\ns_add_u32 s5, s5, {L_XS}\nv_mov_b32 v193, s5\nv_mov_b32 v194, {L_ZERO}')
        p(f'v_cmp_eq_u32 vcc, 0, v15\nv_cndmask_b32 v193, v194, v193, vcc\nv_add_u32 v{aXS}, v192, v193')
        p(f's_lshl_b32 s5, s{WM}, 9\ns_add_u32 s5, s5, {L_RS2}\nv_lshl_add_u32 v{aRS}, v14, 3, s5')
        p(f'v_and_b32 v192, 31, v0\nv_lshl_add_u32 v{aRHO}, v192, 3, s5')
        p(f's_lshl_b32 s5, s{WM}, 14\ns_lshl_b32 s6, s{WN}, 13\ns_add_u32 s5, s5, s6\ns_add_u32 s5, s5, {2*LAYER}')
        p(f'v_bfe_u32 v193, v192, 1, 2\nv_lshlrev_b32 v193, 4, v193\nv_lshl_add_u32 v193, v192, 6, v193\nv_lshrrev_b32 v194, 5, v0\nv_lshl_add_u32 v193, v194, 12, v193\nv_add_u32 v{aPHI}, s5, v193')
        p(f's_lshl_b32 s5, s{WM}, 11\ns_add_u32 s5, s5, s6\ns_add_u32 s6, s5, {MISC if qm else LAYER}\ns_add_u32 s5, s5, {4*LAYER}')
        p(f'v_lshrrev_b32 v193, 2, v14\nv_xor_b32 v194, v193, v15\nv_lshlrev_b32 v194, 3, v194\nv_lshl_add_u32 v194, v14, 5, v194\nv_add_u32 v{aV}, s5, v194')
        p(f'v_and_b32 v193, 2, v193\nv_xor_b32 v194, v193, v15\nv_lshlrev_b32 v194, 3, v194\nv_lshl_add_u32 v194, v14, 5, v194\nv_add_u32 v{aQ}, s6, v194')
        wphi_addr(aWPHI, 192, True)
        b2_addr(CF, CO, 192)
        blk_setup()
        final_addr(192)
        if rw != 32: p(f'v_and_b32 v192, 7, v14\nv_xor_b32 v192, v192, v15\nv_lshlrev_b32 v192, 4, v192\nv_lshl_add_u32 v192, v14, 8, v192')
        if rw != 32: p(f's_add_u32 s5, s{J12}, {2*LAYER}\nv_add_u32 v{RW}, s5, v192\nv_xor_b32 v{RW+1}, 64, v{RW}')
        p(f's_mul_i32 s{A2B}, s{RH2}, {A2_RH}\ns_add_u32 s{A2B}, s{A2B}, {WS_A2}')
        p(f's_lshl_b32 s3, s{RB}, 1\ns_add_u32 s3, s3, s{WM}')
        p(f's_mul_i32 s{PST}, s3, {A2_RH}\ns_add_u32 s5, s{USTART}, s{WN}\ns_lshl_b32 s5, s5, 12\ns_add_u32 s{PST}, s{PST}, s5\ns_add_u32 s{PST}, s{PST}, {WS_A2}')
        p(f's_lshl_b32 s{PFL}, s3, 13\ns_lshl_b32 s5, s{GRP}, 8\ns_add_u32 s{PFL}, s{PFL}, s5\ns_lshl_b32 s5, s{WN}, 7\ns_add_u32 s{PFL}, s{PFL}, s5\ns_add_u32 s{PFL}, s{PFL}, {WS_FH}')
        flag_base()
        p(f'v_lshlrev_b32 v14, 2, v0\nv_lshlrev_b32 v{LN16}, 4, v0')
    fill = p.capture(setup_late)
    for _ in range(min(pre0, len(fill))): p(fill.pop(0))
    while fill and fill[0].startswith(('s_cselect', 'v_cndmask')): p(fill.pop(0))
    if cvt:
        assert pre0 >= 36
        p(f's_lshl2_add_u32 s3, s2, s{J}\ns_mul_i32 s7, s3, 1408\nv_lshlrev_b32 v16, 7, v0\nv_add_u32 v17, s7, v16\ns_mov_b64 exec, 0x7ff')
        p(f'buffer_load_dword v217, v17, {srd(SW2)}, 0 offen', 'pf')
        p(f's_lshl_b32 s7, s3, 9\ns_mov_b64 exec, 0xf')
        p(f'buffer_load_dword v218, v16, {srd(SWO)}, s7 offen', 'pf')
        p('s_mov_b64 exec, -1')
    tramp(2)
    mark('c_set')
    p.wait(vm='st')
    mark('c_st')
    p('s_setprio 2')
    p(f'v_readfirstlane_b32 s{NONCE}, v31')
    for i in range(8):
        p(f'v_lshlrev_b32 v{32+2*i}, 16, v{64+i}\nv_and_b32 v{33+2*i}, 0xffff0000, v{64+i}')
    p(f's_mul_i32 s{NONCE}, s{NONCE}, 0x9E3779B1\ns_add_u32 s{NONCE}, s{NONCE}, 0x7F4A7C15')
    def red32(v, t):
        for d in ('quad_perm:[1,0,3,2]', 'quad_perm:[2,3,0,1]', 'row_half_mirror', 'row_mirror'):
            p(f'v_add_f32_dpp v{v}, v{v}, v{v} {d} row_mask:0xf bank_mask:0xf')
        p(f'v_mov_b32 v{t}, v{v}\nv_permlane16_swap_b32 v{v}, v{t}\nv_add_f32 v{v}, v{v}, v{t}')
    for i in range(4): p(f'v_pk_add_f32 {vr(48+2*i,2)}, {vr(32+4*i,2)}, {vr(34+4*i,2)}')
    p('v_pk_add_f32 v[48:49], v[48:49], v[50:51]\nv_pk_add_f32 v[52:53], v[52:53], v[54:55]\nv_pk_add_f32 v[48:49], v[48:49], v[52:53]')
    p('v_add_f32 v60, v48, v49')
    red32(60, 48)
    p(f'v_mul_f32 v60, {f32(-1/512)}, v60')
    for i in range(8): p(f'v_pk_add_f32 {vr(32+2*i,2)}, {vr(32+2*i,2)}, v[60:61] op_sel_hi:[1,0]')
    p('v_pk_mul_f32 v[48:49], v[32:33], v[32:33]\nv_pk_mul_f32 v[50:51], v[34:35], v[34:35]')
    for i in range(2, 8): p(f'v_pk_fma_f32 {vr(48+2*(i&1),2)}, {vr(32+2*i,2)}, {vr(32+2*i,2)}, {vr(48+2*(i&1),2)}')
    p('v_pk_add_f32 v[48:49], v[48:49], v[50:51]\nv_add_f32 v61, v48, v49')
    red32(61, 48)
    p(f'v_mov_b32 v48, {f32(1e-5)}\nv_fmac_f32 v48, {f32(1/512)}, v61')
    p(f'v_sqrt_f32 v61, v48\nv_mov_b32 v59, s{NONCE}\nv_rcp_f32 v58, v61\nv_mov_b32 v{VNON}, s{NONCE}')
    p('v_cvt_pk_bf16_f32 v48, v60, v61\nv_lshlrev_b32 v50, 16, v48\nv_and_b32 v51, 0xffff0000, v48')
    p('v_pk_add_f32 v[50:51], v[60:61], v[50:51] neg_lo:[0,1] neg_hi:[0,1]')
    p('v_cvt_pk_bf16_f32 v56, v60, v50\nv_cvt_pk_bf16_f32 v57, v61, v51\nv_lshlrev_b32 v30, 4, v30')
    p('s_mov_b32 exec_lo, 1\ns_mov_b32 exec_hi, 1')
    p(f'buffer_store_dwordx4 v[56:59], v30, {srd(SWS)}, s43 offen sc1', 'pf')
    p('s_mov_b64 exec, -1')
    SSLOT, SCNT = 52, 53
    stamp(1)
    p('s_barrier')
    stamp(2); mark('b0')
    def rdA(tt, tag):
        return [(f'ds_read_b128 {vr(AA+8*tt+4*ks,4)}, v{cA+ks} offset:{2048*tt}', tag) for ks in range(2)]
    def rdB(u, tag):
        L = []
        for e in range(2):
            for ks in range(2):
                for hf in range(2):
                    L.append((f'ds_read_b64_tr_b16 {vr(BB+16*u+8*e+4*ks+2*hf,2)}, v{cB+e} offset:{u*8192+ks*4096+hf*512}', tag))
        return L
    def nextreads():
        b = rdB(0, 'B0')
        return [b[0:4], rdA(0, 'A0') + b[4:6], rdA(1, 'A1') + b[6:8], rdA(2, 'A2')]
    def stage(u, gaps, waits=None, first=False):
        for tt in range(4):
            if waits and waits[tt]: p.wait(lg=waits[tt])
            g = list(gaps[tt])
            for e in range(2):
                for ks in range(2):
                    mfma16(acc(u, e, tt), BB + 16*u + 8*e + 4*ks, AA + 8*tt + 4*ks, '0' if first and ks == 0 else None)
                    room = 2
                    if g:
                        x = g.pop(0); p(*x); room -= 1 + x[0].count('\n')
                    while fill and room > 0 and not pb: p(fill.pop(0)); room -= 1
            for x in g: p(*x)
    for grp in nextreads():
        for x in grp: p(*x)
    entry = list(p.lg)
    for t in range(peel):
        b1 = rdB(1, 'B1'); b2 = rdB(2, 'B2')
        stage(0, [rdA(3, 'A3') + b1[0:2], b1[2:6], b1[6:8], []], [['B0', 'A0', 'A1'], None, 'A2', 'A3'], t == 0)
        if t == 0:
            for _ in range(min(pa, len(fill))): p(fill.pop(0))
        so_ = ((t + 1) % 3) * SLOT
        bar = 's_barrier'
        if 'g1' in dbg:
            bar = f's_memtime s[0:1]\ns_waitcnt lgkmcnt(0)\nv_writelane_b32 v222, s0, {t+1}\ns_barrier\ns_memtime s[0:1]\ns_waitcnt lgkmcnt(0)\nv_writelane_b32 v223, s0, {t+1}'
        upd = [(f'v_add_u32 v{cA+i}, {so_}, v{bA+i}',) for i in range(4)]
        if t == 0:
            stage(1, [b2[0:4], b2[4:8], upd, []], ['B1', None, None, None], True)
            for _ in range(min(pre1, len(fill))): p(fill.pop(0))
            p('s_waitcnt lgkmcnt(0)'); p(bar)
        else:
            stage(1, [b2[0:4], b2[4:8], upd, [('s_waitcnt lgkmcnt(0)',), (bar,)]], ['B1', None, None, None])
        if t == peel - 1: fill += [f's_mov_b32 s{SSLOT}, {so_}', f's_mov_b32 s{SCNT}, {peel}']
        stage(2, nextreads(), None, t == 0)
    print('left-over set-up instructions:', len(fill))
    while fill: p(fill.pop(0))
    assert p.lg == entry
    if lrot:
        p('s_branch L_g1\nL_g1r:')
        p.lg = []
        stage(2, nextreads())
        assert p.lg == entry
    p('L_g1:')
    b1 = rdB(1, 'B1'); b2 = rdB(2, 'B2')
    stage(0, [rdA(3, 'A3') + b1[0:2], b1[2:6], b1[6:8], []], [['B0', 'A0', 'A1'], None, 'A2', 'A3'])
    bar = 's_barrier'
    if 'g1' in dbg:
        bar = f's_memtime s[54:55]\ns_mov_b32 m0, s{SCNT}\ns_waitcnt lgkmcnt(0)\nv_writelane_b32 v222, s54, m0\ns_barrier\ns_memtime s[54:55]\ns_waitcnt lgkmcnt(0)\nv_writelane_b32 v223, s54, m0'
    upd = [(f's_add_u32 s{SSLOT}, s{SSLOT}, {SLOT}\ns_cmp_eq_u32 s{SSLOT}, {3*SLOT}',), (f's_cselect_b32 s{SSLOT}, 0, s{SSLOT}\ns_add_u32 s{SCNT}, s{SCNT}, 1',),
           (f'v_add_u32 v{cA}, s{SSLOT}, v{bA}\nv_add_u32 v{cA+1}, s{SSLOT}, v{bA+1}',), (f'v_add_u32 v{cB}, s{SSLOT}, v{bB}\nv_add_u32 v{cB+1}, s{SSLOT}, v{bB+1}',)]
    stage(1, [b2[0:4], b2[4:8], upd, [(f's_cmp_eq_u32 s{SCNT}, 8',), ('s_waitcnt lgkmcnt(0)',), (bar,)]], ['B1', None, None, None])
    if lrot:
        p('s_cbranch_scc0 L_g1r')
    else:
        p('s_cbranch_scc1 L_g1x')
        stage(2, nextreads())
        assert p.lg == entry, (p.lg, entry)
        p('s_branch L_g1')
    p.lg = []
    p('L_g1x:')
    mark('b8')
    p.wait(vm='pf')
    if finc == 1: final_loads()
    if 'g1' in dbg:
        for i in range(1, 9): p(f"v_readlane_b32 s{84+2*i}, v{222 if 'g1a' in dbg else 223}, {i}")
        nostamp[0] = True
    ws = [(f'ds_read_b128 {vr(BB+4*(2*u+e),4)}, v{aWS} offset:{u*1024+e*256}', 'WS') for u in range(3) for e in range(2)]
    XS = 192
    xs = [(f'ds_read_b128 {vr(XS+4*tt,4)}, v{aXS} offset:{256*tt}', 'XS') for tt in range(4)]
    RS = 208
    rs = [(f'ds_read_b64 {vr(RS+2*tt,2)}, v{aRS} offset:{128*tt}', 'RS') for tt in range(4)]
    stage(2, [xs, ws[0:4], ws[4:6] + rs[0:2], rs[2:4]])
    def corr(u):
        return [(lambda tt=tt, e=e: mfma16(acc(u, e, tt), BB + 4 * (2 * u + e), XS + 4 * tt)) for tt in range(4) for e in range(2)]
    if finc == 0: final_loads()
    p.wait(lg=['WS', 'XS'])
    p(f's_cmp_eq_u32 s{TYPE}, 0\ns_cbranch_scc1 L_Catt')
    save = (list(p.vm), list(p.lg))
    if finc == 2: final_loads()
    for m in corr(0): m()
    p('s_waitcnt lgkmcnt(0)')
    stamp(3)
    KK, K1 = 216, 64
    for tt in range(4):
        p(f'v_mul_f32 v{K1+2*tt}, {f32(GK1)}, v{RS+2*tt+1}\nv_mul_f32 v{KK+2*tt}, v{RS+2*tt+1}, v{RS+2*tt+1}')
        p(f'v_mul_f32 v{KK+2*tt}, v{KK+2*tt}, v{K1+2*tt}\nv_mul_f32 v{KK+2*tt}, {f32(0.044715)}, v{KK+2*tt}')
    cnt = 0
    for u in range(3):
        if u == 2:
            p(f's_sub_u32 s5, 1, s{WN}\ns_or_b32 s5, s5, s{SIX}\ns_cmp_eq_u32 s5, 0\ns_cbranch_scc1 L_gelu_skip')
            vm_at_skip = list(p.vm)
        nxt = corr(u + 1) if u < 2 else []
        for tt in range(4):
            T = 40 + 8 * (cnt & 1); O = 56 + 4 * (cnt & 1); cnt += 1
            prs = [acc(u, 0, tt), acc(u, 0, tt) + 2, acc(u, 1, tt), acc(u, 1, tt) + 2]
            for i, a in enumerate(prs): p(f'v_pk_mul_f32 {vr(T+2*i,2)}, {vr(a,2)}, {vr(a,2)}')
            for i, a in enumerate(prs): p(f'v_pk_fma_f32 {vr(T+2*i,2)}, {vr(T+2*i,2)}, {vr(KK+2*tt,2)}, {vr(K1+2*tt,2)} op_sel_hi:[1,0,0]')
            for i, a in enumerate(prs): p(f'v_pk_mul_f32 {vr(T+2*i,2)}, {vr(T+2*i,2)}, {vr(a,2)}')
            for i in range(8):
                p(f'v_exp_f32 v{T+i}, v{T+i}')
                if i in (0, 2) and nxt: nxt.pop(0)()
            for i, a in enumerate(prs): p(f'v_pk_fma_f32 {vr(T+2*i,2)}, {vr(T+2*i,2)}, {vr(RS+2*tt,2)}, {vr(RS+2*tt,2)} op_sel_hi:[1,0,0]')
            for i in range(8): p(f'v_rcp_f32 v{T+i}, v{T+i}')
            for i, a in enumerate(prs): p(f'v_pk_mul_f32 {vr(T+2*i,2)}, {vr(T+2*i,2)}, {vr(a,2)}')
            for i in range(4): p(f'v_cvt_pk_bf16_f32 v{O+i}, v{T+2*i}, v{T+2*i+1}')
            if 'xst' not in dbg or tt == 3: p(f'buffer_store_dwordx4 {vr(O,4)}, v{LN16}, {srd(SWS)}, s{PST} offen offset:{1024*tt} ' + hf_.replace('_', ' '), f'h{u}')
            if 4 * u + tt == bg: p('s_barrier')
            if tt == ft and u >= 1:
                if 'gel' in dbg: stamp(3 + 2 * u)
                p.wait(vm=f'h{u-1}')
                if 'gel' in dbg: stamp(4 + 2 * u)
                lineflag(PFL, 14, VNON, 2048 * (u - 1))
        if u < 2: p(f's_add_u32 s{PST}, s{PST}, 8192')
    p('s_branch L_gelu_e')
    p('L_gelu_skip:')
    p('s_waitcnt vmcnt(0)')
    lineflag(PFL, 14, VNON, 2048)
    if bg >= 8: p('s_barrier')
    p('L_gelu_e:')
    stamp(4)
    if 'gel' in dbg: nostamp[0] = True
    p(f's_add_u32 s{PFL}, s{PFL}, 4096')
    mark('gelu')
    if cf:
        p.vm = ['h2'] + ['flag'] * (ft == 3)
        for i in range(e1, min(9, e1 + cf1)): b2_dma(i, CF, CO, 'd')
        p.wait(vm='h2')
        lineflag(PFL, 14, VNON)
        p('s_setprio 0')
        for i in range(e1 + cf1, 9): b2_dma(i, CF, CO, 'd')
    p('s_barrier')
    if nl_ == 10: b2_dma(9, CF, CO, 'd')
    p('s_branch L_ph2')
    p.vm, p.lg = save
    p('L_Catt:')
    A0, A1, CC = 64, 68, 216
    PK = 72
    wphi_frags(aWPHI, A0, A1, 2)
    p(f'ds_read_b32 v{CC}, v{aRHO}\nds_read_b32 v{CC+2}, v{aRHO} offset:256', 'wphi')
    for m in corr(1): m()
    wphi_mask(A0, A1, 2)
    stamp(3); mark('ck')
    late = corr(2) + ([] if dcq else corr(0))
    DD = [40, 24 if dcq else 16]
    for sg in range(2):
        for hh in range(2):
            b = PK + 8 * sg + 4 * hh
            for a in range(2):
                s = acc(1, hh, 2 * sg + a)
                late.pop(0)()
                p(f'v_cvt_pk_bf16_f32 v{b+2*a}, v{s}, v{s+1}\nv_cvt_pk_bf16_f32 v{b+2*a+1}, v{s+2}, v{s+3}')
    for sg in range(2):
        for hh in range(2):
            b = PK + 8 * sg + 4 * hh
            if late: late.pop(0)(); late.pop(0)()
            p(f'v_permlane16_swap_b32 v{b}, v{b+2}\nv_permlane16_swap_b32 v{b+1}, v{b+3}')
    p(f'v_mul_f32 v{CC}, {f32(LOG2E)}, v{CC}\nv_mul_f32 v{CC+2}, {f32(LOG2E)}, v{CC+2}')
    pm = [lambda sg=sg, h=h: mfma32(DD[sg], (A0, A1)[h], PK + 8 * sg + 4 * h, None if h else '0') for sg in range(2) for h in range(2)]
    if not dcq:
        for f in pm: f()
        pm = []
    mark('proj')
    wr = []
    def qstage(now):
        for e in range(2):
            for tt in range(4):
                s = acc(0, e, tt)
                p(f'v_cvt_pk_bf16_f32 v{s}, v{s}, v{s+1}\nv_cvt_pk_bf16_f32 v{s+1}, v{s+2}, v{s+3}')
                f = lambda s=s, e=e, tt=tt: p(f'ds_write_b64 v{aQ}, {vr(s,2)} offset:{e*4096+tt*512}')
                if now: f()
                else: wr.append(f)
    if not dq: qstage(False)
    n = 0
    for tt in range(4):
        for e in range(2):
            s = acc(2, e, tt)
            nopk[0] = bool(dcq) and n < 5
            if pm: pm.pop(0)()
            mul2s(s, s, RS + 2 * tt); mul2s(s + 2, s + 2, RS + 2 * tt)
            p(f'v_cvt_pk_bf16_f32 v{s}, v{s}, v{s+1}\nv_cvt_pk_bf16_f32 v{s+1}, v{s+2}, v{s+3}')
            wr.append(lambda s=s, e=e, tt=tt: p(f'ds_write_b64 v{aV}, {vr(s,2)} offset:{e*4096+tt*512}'))
            n += 1
    nopk[0] = False
    p(f'v_xor_b32 v2, 16, v{aPHI}\nv_xor_b32 v3, 32, v{aPHI}\nv_xor_b32 v4, 48, v{aPHI}')
    mark('vp')
    KO = acc(1, 0, 0)
    for sg in range(2):
        f = lambda sign, i, sg=sg: KO + 16 * sg + 8 * sign + i
        def after(sign, i, sg=sg):
            if i & 3 == 3:
                c = 2 * sign + (i >> 2)
                p(f'ds_write_b128 v{(aPHI, 2, 3, 4)[c]}, {vr(KO+16*sg+4*c,4)} offset:{2048*sg}')
        f.after = after
        softmax(DD[sg], 72, 88, CC + 2 * sg, CC + 4, f, wr[len(wr)//2*sg:len(wr)//2*(sg+1)])
        mark(f'k{sg}')
    p('s_waitcnt lgkmcnt(0)')
    stamp(4)
    p('s_setprio 0')
    p('s_barrier')
    if 'xwo' in dbg:
        for i in range(4): p(f'v_mov_b32 v{CO+i}, 0x7fff0000')
    if finc == 2: final_loads()
    if dcq:
        for m in corr(0): m()
    if dq:
        qstage(True)
        p('s_waitcnt lgkmcnt(0)')
    p('s_barrier')
    if qm:
        assert dq
        for i in range(6, nl_):
            if i == 6 + p0: prepoll(0)
            b2_dma(i, CF, CO, 'h2', dthr)
            if i == 6 and nl_ == 10: p('s_barrier')
    else:
        b2_dma(6, CF, CO, 'h2')
        if dq: p('s_barrier')
        b2_dma(5, CF, CO, 'h2', dthr)
        prepoll(0)
        for i in range(7, nl_): b2_dma(i, CF, CO, 'h2', dthr)
    chkpoll(0)
    p('L_ph2:')
    p.vm = ['h2'] + ['flag'] * (ft == 3); p.lg = []
    TB = 2
    for bs in range(1, 3):
        for ct in range(4): p(f'v_add_u32 v{TB+4*(bs-1)+ct}, {65536*bs}, v{TB0+ct}')
    def tbreg(o, ct): return TB0 + ct if o < 65536 else TB + 4 * ((o >> 16) - 1) + ct
    def sync(r):
        la = p.label('L_sa'); le = p.label('L_se')
        p(f's_cmp_eq_u32 s{TYPE}, 0\ns_cbranch_scc1 {la}')
        p(f's_barrier\ns_branch {le}')
        p(f'{la}:')
        sv = list(p.vm)
        chkpoll(r)
        p.vm = sv
        p(f'{le}:')
    slow = []
    def check(regs):
        p(f'v_max3_u32 v12, v{regs[0]}, v{regs[1]}, v{regs[2]}\nv_max_u32 v12, v12, v{regs[3]}')
        p('v_cmp_eq_u32 vcc, -1, v12\ns_and_b64 vcc, vcc, s[0:1]')
    def vcheck(tt):
        p.wait(vm=f'O{tt}')
        if so and 'xo' not in dbg: check([A2 + 16 * tt + 4 * i + 3 for i in range(4)])
    def vbranch(tt, issued):
        if not so or 'xo' in dbg: return
        lc = p.label('L_vc'); ls = p.label('L_vs')
        p(f's_cbranch_vccnz {ls}')
        p(f'{lc}:')
        slow.append((lc, ls, tt, issued))
    p(f's_cmp_eq_u32 s{J}, 3\ns_cselect_b64 s[72:73], 1, -1')
    def thinned(f):
        def g():
            p('s_mov_b64 exec, s[72:73]'); f(); p('s_mov_b64 exec, -1')
        return g if thin else f
    p('s_mov_b64 s[0:1], -1\ns_mov_b32 s3, 0')
    B2, AC2, A2 = 16, 40, 104
    def acc2(ct, tt): return AC2 + (ct * 4 + tt) * 4
    def mm2(d, w, a, c=None):
        if rw == 32: mfma16(d, a, w, c)
        else: mfma16(d, w, a, c)
    groups = [(0, 1), (2, 3), (4, 5), (6, 7), (8, 9), (10,)]
    def abuf(gi, bi, tt): return A2 + 32 * (gi % 3) + 16 * bi + 4 * tt
    OB = 52
    def opsA(gi):
        L = []
        for bi, b in enumerate(groups[gi]):
            for tt in range(4):
                def f(bi=bi, b=b, tt=tt):
                    if tt == 0:
                        blk_idx(b)
                        p(f's_lshl_b32 s6, s6, 12\ns_add_u32 s6, s6, s{A2B}')
                    if 'xa2' in dbg: p(f'buffer_load_dwordx4 {vr(abuf(gi,bi,tt),4)}, v{LN16}, {srd(SX)}, s{J12} offen offset:{1024*tt} sc1', f'A{gi}')
                    else: p(f'buffer_load_dwordx4 {vr(abuf(gi,bi,tt),4)}, v{LN16}, {srd(SWS)}, s6 offen offset:{1024*tt} ' + af.replace('_', ' '), f'A{gi}')
                L.append(f)
        return L
    def opsR(b):
        L = []
        for rg in range(4):
            def f(rg=rg):
                if rg == 0:
                    p(f's_add_u32 m0, s{J12}, {LAYERS[b % nl_]*LAYER}')
                    blk_idx(b)
                    p(f's_lshl_b32 s6, s6, 15' + ('' if 'xb2' in dbg else f'\ns_add_u32 s6, s6, s{CB7}'))
                v, sr = (CF, SW2) if b < 11 else (CO, SWO)
                if 'xr' not in dbg or rg == 0: p(f'buffer_load_dwordx4 v{v+rg}, {srd(sr)}, s6 offen offset:{1024*rg} {bf} lds', f'R{b}')
            L.append(f)
        return L
    def opsO(tt):
        return [(lambda i=i: p(f'buffer_load_dwordx4 {vr(A2+16*tt+4*i,4)}, v{LN16}, {srd(SWS)}, s{OB+i} offen offset:{1024*tt} sc1', f'O{tt}')) for i in range(4)]
    def loadO(tt):
        for f in opsO(tt): f()
    def rdB2(gi, ct):
        s = gi * 4 + ct; L = []
        for bi, b in enumerate(groups[gi]):
            o = LAYERS[b % nl_] * LAYER
            for hf in range(2):
                L.append((f'ds_read_b64_tr_b16 {vr(B2+8*(s%3)+4*bi+2*hf,2)}, v{tbreg(o, ct)} offset:{(o&0xffff)+hf*512}', f'b{s}'))
        return L
    BO = 168
    def rdBO(ct):
        L = []
        for i in range(4):
            o = LAYERS[(11 + i) % nl_] * LAYER
            for hf in range(2):
                L.append((f'ds_read_b64_tr_b16 {vr(BO+16*ct+4*i+2*hf,2)}, v{tbreg(o, ct)} offset:{(o&0xffff)+hf*512}', 'bo'))
        return L
    stamp(5); mark('ph2')
    for f in opsA(0): f()
    prepoll(1)
    if not cf:
        p(f's_cmp_eq_u32 s{TYPE}, 0\ns_cbranch_scc1 L_nofl')
        sv = list(p.vm)
        p.wait(vm='h2')
        lineflag(PFL, 14, VNON)
        p('s_setprio 0')
        p.vm = sv
        p('L_nofl:')
    S = [(gi, ct) for gi in range(6) for ct in range(4)]
    for (gi, ct) in S[:2]:
        for x in rdB2(gi, ct): p(*x)
    for f in opsA(1): f()
    for i in range(4):
        blk_idx(11 + i)
        p(f's_lshl_b32 s6, s6, 12\ns_add_u32 s6, s6, s{A2B}\ns_add_u32 s{OB+i}, s6, {0 if "xo" in dbg else 44*4096}')
    final_part(200)
    mark('s1a')
    sync(1)
    mark('s1b')
    def pre3():
        if p3 == 2: return
        if p3: p(f's_cmp_eq_u32 s{TYPE}, 0\ns_cbranch_scc1 L_no3\ns_barrier\nL_no3:')
        prepoll(3)
    def chk3():
        if p3 == 2: return p('s_barrier')
        if p3: return sync(3)
        p(f's_cmp_eq_u32 s{TYPE}, 0\ns_cbranch_scc0 L_no3')
        sv = list(p.vm)
        chkpoll(3)
        p.vm = sv
        p('L_no3:')
    a2, a3, a4, a5 = opsA(2), opsA(3), opsA(4), [thinned(f) for f in opsA(5)]
    o0, o1, o2, o3 = opsO(0), opsO(1), opsO(2), opsO(3)
    r910, r1112, r13, r14 = opsR(9) + [thinned(f) for f in opsR(10)], opsR(11) + opsR(12), opsR(13), opsR(14)
    if nl_ == 10:
        assert cf
        r910, r1112, r13 = [thinned(f) for f in opsR(10)] + opsR(11), opsR(12) + opsR(13), []
    def bo123():
        p.wait(vm='R14')
        for ct in (1, 2, 3):
            for x in rdBO(ct): p(*x)
            o1.pop(0)()
        o1.pop(0)()
    plan = {
        (0, 0): a2[0:2], (0, 1): a2[2:4], (0, 2): a2[4:6], (0, 3): a2[6:8],
        (1, 0): a3[0:2], (1, 1): a3[2:4], (1, 2): a3[4:6], (1, 3): a3[6:8],
        (2, 0): r910[0:2], (2, 1): r910[2:4], (2, 2): [lambda: prepoll(2)] + r910[4:6], (2, 3): r910[6:8],
        (3, 0): r1112[0:2], (3, 1): r1112[2:4], (3, 2): r1112[4:6],
    }
    if ord2:
        plan.update({(3, 3): r1112[6:8] + [lambda: (mark('s2a'), sync(2), mark('s2b'))] + a4 + [pre3] + r13 + r14,
                     (4, 0): a5[0:2], (4, 1): a5[2:4], (4, 2): [chk3] + o0[0:2], (4, 3): o0[2:4] + [bo123],
                     (5, 0): o2[0:1], (5, 1): o2[1:2], (5, 2): o2[2:3], (5, 3): o2[3:4]})
    else:
        plan.update({(3, 3): r1112[6:8] + [lambda: (mark('s2a'), sync(2), mark('s2b'))] + a4 + a5 + [pre3] + r13,
                     (4, 0): r14[0:2], (4, 1): r14[2:4], (4, 2): [chk3] + o0[0:2], (4, 3): o0[2:4],
                     (5, 0): o1[0:1], (5, 1): o1[1:2], (5, 2): o1[2:3], (5, 3): o1[3:4]})
    if nl_ == 10 and ord2 == 2:
        plan.update({(3, 3): r1112[6:8] + [lambda: (mark('s2a'), sync(2), mark('s2b'))] + a4 + [pre3] + a5 + r14,
                     (4, 0): [chk3], (4, 1): o0[0:2], (4, 2): o0[2:4], (4, 3): [bo123]})
    before = {}
    if dens:
        assert ord2 == 0 and nl_ == 9
        s2 = lambda: (mark('s2a'), sync(2), mark('s2b'))
        def spread(gi, L, tail=[]):
            n = (len(L) + 3) // 4
            for ct in range(4): plan[(gi, ct)] = L[n*ct:n*ct+n] + (tail if ct == 3 else [])
        if dens == 1:
            spread(1, a3 + r910[0:4]); spread(2, r910[4:8] + [lambda: prepoll(2)] + r1112); spread(3, a4 + a5, [pre3] + r13)
            before = {(3, 0): s2}
        elif dens == 2:
            spread(1, a3 + r910[0:4]); spread(2, r910[4:8] + r1112); spread(3, [lambda: prepoll(2)] + r13 + r14, [s2] + a4 + [pre3] + a5)
            spread(4, [chk3] + o0)
        elif dens == 3:
            spread(1, a3 + r910[0:4]); spread(2, r910[4:8] + [lambda: prepoll(2)] + r1112); spread(3, a4 + a5 + [pre3] + r13)
            before = {(3, 0): s2}
    for k, (gi, ct) in enumerate(S):
        s = gi * 4 + ct
        if (gi, ct) in before: before[(gi, ct)]()
        nxt = []
        if k + 2 < len(S):
            g2, c2 = S[k + 2]
            if c2 == 0: p.wait(vm=[f'R{b}' for b in groups[g2]])
            nxt = rdB2(g2, c2)
        if ct == 0:
            p.wait(vm=f'A{gi}')
            if gi == 0: stamp(6)
            mark(f'g{gi}s')
        p.wait(lg=f'b{s}')
        vops = list(plan[(gi, ct)])
        if gi == 5:
            for x in nxt: p(*x)
            skip = p.label('L_skip')
            p(f's_cmp_eq_u32 s{J}, 3\ns_cbranch_scc1 {skip}')
            for tt in range(4): mm2(acc2(ct, tt), B2 + 8 * (s % 3), abuf(gi, 0, tt))
            p(f'{skip}:')
            for f in vops: f()
        else:
            n = 0
            for tt in range(4):
                for bi in range(2):
                    mm2(acc2(ct, tt), B2 + 8 * (s % 3) + 4 * bi, abuf(gi, bi, tt), '0' if (gi == 0 and bi == 0) else None)
                    if nxt: p(*nxt.pop(0))
                    n += 1
                    if vops and (n % 4 == 0 or (dens and n % 2 == 0 and len(vops) > (8 - n) // 4 and n >= 2)): vops.pop(0)()
            for f in vops: f()
        if ct == 3: mark(f'g{gi}e')
    stamp(7); mark('ffn')
    if not ord2:
        p.wait(vm='R14')
        for ct in (1, 2, 3):
            for x in rdBO(ct): p(*x)
            o2.pop(0)()
        o2.pop(0)()
    p('s_waitcnt lgkmcnt(0)')
    for x in rdBO(0): p(*x)
    CTS = (1, 2, 3, 0)
    def redw(tt, ct):
        def f(r):
            if ct == CTS[0] and r == 0 and tt in (0, 2): p(f's_add_u32 m0, s{J12}, {(tt >> 1) * 53000}')
            o = (2 * tt + (r >> 1)) * LAYER + (r & 1) * 1344 + (r >> 1) * 128 + (ct >> 1) * 768 + (ct & 1) * 272 - (tt >> 1) * 53000
            assert 0 <= o < 65536, o
            p(f'ds_write_addtid_b32 v{acc2(ct,tt)+r} offset:{o}', f'w{tt}')
        return [(lambda r=r: f(r)) for r in range(4)]
    pend = []
    vcheck(0)
    for tt in range(4):
        if tt and not hv: vcheck(tt)
        vbranch(tt, 3 if tt == 0 else 4)
        if tt == 0: stamp(8)
        mark(f'v{tt}')
        for n, ct in enumerate(CTS):
            if tt == 0 and n == 2: p.wait(lg='bo')
            w = redw(*pend.pop(0)) if len(pend) >= 2 else []
            for i in range(4):
                mm2(acc2(ct, tt), BO + 16 * ct + 4 * i, A2 + 16 * tt + 4 * i)
                if w: w.pop(0)()
                if tt == 0 and n < 2 and i & 1: o3.pop(0)()
            pend.append((tt, ct))
            if hv and n == 2 and tt < 3: vcheck(tt + 1)
        if tt == 2:
            p.wait(lg='w1')
            mark('br1a')
            p('s_barrier')
            mark('br1b')
    for x in pend:
        for f in redw(*x): f()
    p('s_waitcnt lgkmcnt(0)')
    mark('br2a')
    p('s_barrier')
    mark('br2b')
    stamp(9)
    final_sum()
    mark('fin')
    p('L_done:')
    if 'gel' in dbg: nostamp[0] = False
    if prof:
        p('s_waitcnt vmcnt(0)')
        stamp(10)
        p(f's_cmp_eq_u32 s{J}, {wj}\ns_cbranch_scc0 L_end')
        for i in range(11): p(f'v_writelane_b32 v4, s{80+2*i}, {i}')
        p(f's_lshl_b32 s5, s2, 7\ns_lshl_b32 s6, s{WV}, 4\ns_add_u32 s5, s5, s6\ns_add_u32 s5, s5, {WS_STAMP - 16*wj}')
        p('v_lshlrev_b32 v5, 2, v0\ns_mov_b64 exec, 0x7ff')
        p(f'buffer_store_dword v4, v5, {srd(SWS)}, s5 offen')
    p('L_end:')
    p('s_endpgm')
    for lc, ls, tt, issued in slow:
        p(f'{ls}:')
        p(f's_add_u32 s3, s3, 1\ns_cmp_gt_u32 s3, {SPIN}\ns_cselect_b64 s[0:1], 0, s[0:1]')
        loadO(tt)
        p('s_waitcnt vmcnt(0)')
        check([A2 + 16 * tt + 4 * i + 3 for i in range(4)])
        p(f's_cbranch_scc1 {ls}')
        for t2 in range(tt + 1, issued): loadO(t2)
        p(f's_branch {lc}')
    p('L_codeend:')
    if 'noal' not in dbg: print('align', align8(p, 3 if 'pad' in dbg else 1000))
    bad = p.check_edges()
    assert not bad, bad
    hdr = open('cdna_kernels/' + NAME + '.s.ref').read().split('; Override launch')[0]
    hdr = '\n'.join(l[2:] for l in hdr.strip().split('\n'))
    hdr += """
One launch, 256 workgroups (one per CU), 8 waves each: waves 0-3 load / exchange ("H"), waves 4-7 compute ("C").
Phase 1: 128 tokens x 192 columns of x @ [wqkv | w1] per workgroup (even column groups: k, v of four heads and q of
  the neighbouring four; odd groups: FFN columns).  LayerNorm is applied after the product:
  rstd * (x@W - mean * colsum(W)) + b1, with row statistics and column sums shared between workgroups.
  Epilogues: tanh-GELU -> h ; feature map + dual softmax (true row max / min) -> phi_k^T v and sum(phi_k) partials,
  reduced over the sequence in two steps, then o = phi_q kv / (phi_q z + 1e-6).
Phase 2: 64 x 64 output tile per workgroup, [h | o] @ [w2 ; wo] split over K between the C waves, summed through
  LDS with x and b2.
Hand-offs go through d_ws with write-through stores and L1-bypassing loads, so they hold for any placement.  Flags
  and tags carry a per-launch value derived from the word at d_ws[0] (used only to tell this launch's hand-offs from
  an earlier launch's); kv / o buffers are first filled with a sentinel by their producer and re-read until it is gone.
  Every wait is a bounded spin with a short back-off.  Generated by a script of mine."""
    return file_text([dict(name=NAME + '_kernel', body=p.text() + '    ; never executed: keeps the 32 KB that the entry block touches inside the code section\n    .fill (33024-(L_codeend-L_start))/4, 4, 0xbf810000\n', grid=256, block=512, lds=163840, vgpr=256, accum=256)], comment=hdr), p

if __name__ == '__main__':
    import argparse
    ap = argparse.ArgumentParser()
    ap.add_argument('-o', default='v26.s')
    for n, d in OPTS.items(): ap.add_argument('--' + n, type=type(d), default=d)
    a = ap.parse_args()
    t, p = gen(**{n: getattr(a, n) for n in OPTS})
    open(a.o, 'w').write(t)
    print('instructions', sum(1 for i in p.ins if i.kind != 'none'), 'nop states', p.nops)
```
